```python
import torch

def _softmax(x, axis=-1):
    return torch.softmax(x, dim=axis)
def _gelu(x):
    return torch.nn.functional.gelu(x, approximate="tanh")
def _silu(x):
    return torch.nn.functional.silu(x)
def _sigmoid(x):
    return torch.sigmoid(x)
def _layernorm(x, axis=-1, eps=1e-5):
    m = x.mean(dim=axis, keepdim=True)
    v = x.var(dim=axis, keepdim=True, unbiased=False)
    return (x - m) / torch.sqrt(v + eps)
def _scatter_add(tgt, idx, src, axis=0):
    return tgt.clone().index_add_(axis, idx, src)
def _segment_sum(src, seg, n):
    out = torch.zeros((n,) + src.shape[1:], dtype=src.dtype)
    return out.index_add_(0, seg, src)
def _pad(x, pw):
    flat = tuple(v for pair in reversed(pw) for v in pair)
    return torch.nn.functional.pad(x, flat)

kernel_name = 'standalone__dense_activation_gelu__prompt'

def setup_inputs():

    _w = (lambda a: (lambda t: t.to(torch.bfloat16) if t.is_floating_point() else t)(torch.as_tensor(a)))
    B, S, D, F = 1, 2048, 640, 1728
    return {
        "x": _w((lambda *s: torch.randn(*s, dtype=torch.bfloat16) * 0.05)(B, S, D)),
        "w1": _w((lambda *s: torch.randn(*s, dtype=torch.bfloat16) * 3.2)(D, F) * (D ** -0.5)),
        "b1": _w((lambda *s: torch.randn(*s, dtype=torch.bfloat16) * 3.2)(F) * 0.01),
        "w2": _w((lambda *s: torch.randn(*s, dtype=torch.bfloat16) * 0.05)(F, D) * (F ** -0.5)),
        "b2": _w((lambda *s: torch.randn(*s, dtype=torch.bfloat16) * 0.1)(D) * 0.01),
    }

def reference(x, w1, b1, w2, b2):
    h = torch.einsum("bsd,df->bsf", x, w1) + b1
    h = _gelu(h)
    return torch.einsum("bsf,fd->bsd", h, w2) + b2
```

```python
import re

REG = re.compile(r'^(-?|abs\()?([vas])(?:(\d+)|\[(\d+):(\d+)\])\)?$')
TRANS = ('v_exp_f32', 'v_rcp_f32', 'v_log_f32', 'v_rsq_f32', 'v_sqrt_f32')


def regs_of(tok):
    tok = tok.strip()
    if tok in ('vcc', 'exec', 'm0'):
        return {tok}
    m = REG.match(tok)
    if not m:
        return set()
    k = m.group(2)
    if m.group(3) is not None:
        return {(k, int(m.group(3)))}
    return {(k, i) for i in range(int(m.group(4)), int(m.group(5)) + 1)}


class Ins:
    def __init__(self, text):
        self.text = text
        body = text.split(';')[0].strip()
        parts = body.split(None, 1)
        self.op = parts[0]
        rest = parts[1] if len(parts) > 1 else ''
        toks = [t.strip() for t in rest.split(',')] if rest else []
        if toks:
            last = toks[-1].split()
            self.mods = last[1:]
            toks[-1] = last[0] if last else ''
        else:
            self.mods = []
        self.toks = toks
        op = self.op
        self.kind = 'other'
        self.defs, self.uses = set(), set()
        self.srcC = set(); self.srcAB = set(); self.sdata = set(); self.passes = 0
        R = [regs_of(t) for t in toks]
        if op.startswith('v_mfma'):
            self.kind = 'mfma'
            self.defs = R[0]; self.srcAB = R[1] | R[2]; self.srcC = R[3]
            self.uses = self.srcAB | self.srcC
            self.passes = 8 if '32x32' in op else 4
        elif op.startswith('v_'):
            self.kind = 'valu'
            self.defs = set(R[0]); self.uses = set().union(*R[1:]) if len(R) > 1 else set()
            if op.startswith('v_permlane') and 'swap' in op:
                self.defs = R[0] | R[1]; self.uses = R[0] | R[1]
            if op.startswith(('v_fmac', 'v_writelane')):
                self.uses |= R[0]
            if op.startswith(('v_add_co', 'v_addc_co', 'v_sub_co')):
                self.defs |= R[1]; self.uses = set().union(*R[2:])
        elif op.startswith('ds_read'):
            self.kind = 'ds'; self.defs = R[0]; self.uses = R[1]
        elif op.startswith('ds_write'):
            self.kind = 'ds'; self.uses = set().union(*R)
        elif op.startswith(('buffer_load', 'global_load')):
            self.kind = 'vmem'
            if 'lds' in self.mods:
                self.uses = set().union(*R) | {'m0'}; self.lds_dma = True
            else:
                self.defs = R[0]; self.uses = set().union(*R[1:])
        elif op.startswith(('buffer_store', 'buffer_atomic')):
            self.kind = 'vmem'; self.uses = set().union(*R)
            if op.endswith(('x3', 'x4')):
                self.sdata = R[0]
            if op.startswith('buffer_atomic') and 'sc0' in self.mods:
                self.defs = R[0]
        elif op.startswith('s_'):
            self.kind = 'salu'
            if op.startswith(('s_cmp', 's_waitcnt', 's_nop', 's_barrier', 's_cbranch', 's_branch', 's_endpgm', 's_sleep', 's_setprio')):
                self.uses = set().union(*R) if R else set()
            else:
                self.defs = set(R[0]) if R else set()
                self.uses = set().union(*R[1:]) if len(R) > 1 else set()
                if 'saveexec' in op:
                    self.defs |= {'exec'}
        self.states = 1
        if op == 's_nop':
            self.states = int(toks[0], 0) + 1


def need_states(p, c):
    n = 0
    vec = lambda s: {r for r in s if isinstance(r, tuple) and r[0] in 'va'}
    sca = lambda s: {r for r in s if r == 'vcc' or (isinstance(r, tuple) and r[0] == 's')}
    if p.kind == 'valu':
        pv = vec(p.defs); ps = sca(p.defs)
        if c.kind == 'mfma' and pv & c.uses: n = max(n, 2)
        if c.op.startswith('v_permlane') and pv & c.uses: n = max(n, 2)
        if c.op.startswith(('v_readfirstlane', 'v_readlane')) and pv & c.uses: n = max(n, 1)
        if p.op.startswith(TRANS) and c.kind == 'valu' and pv & c.uses: n = max(n, 1)
        if c.kind == 'vmem' and ps & c.uses: n = max(n, 5)
        if c.kind == 'valu' and ps & c.uses: n = max(n, 2)
        if c.kind == 'valu' and 'vcc' in ps and c.op.startswith('v_cndmask'): n = max(n, 2)
        if c.kind == 'salu' and ps & c.uses: n = max(n, 2)
        if 'exec' in p.defs: n = max(n, 5)
    if p.kind == 'mfma':
        big = p.passes == 8
        if c.kind == 'mfma':
            if p.defs & c.srcAB: n = max(n, 12 if big else 8)
            if p.defs & c.srcC and not (p.defs == c.srcC and p.passes == c.passes): n = max(n, 10 if big else 6)
            if p.defs & c.defs and not (p.defs == c.srcC and p.passes == c.passes): n = max(n, 10 if big else 6)
        elif c.kind in ('valu', 'vmem', 'ds'):
            if p.defs & (c.uses | c.defs): n = max(n, 12 if big else 8)
            if c.kind == 'valu' and p.srcC & c.defs: n = max(n, 7 if big else 3)
    if p.kind == 'vmem' and p.sdata and c.kind in ('valu', 'ds', 'vmem', 'mfma') and p.sdata & c.defs: n = max(n, 2)
    if p.kind == 'salu' and 'm0' in p.defs and getattr(c, 'lds_dma', False): n = max(n, 1)
    if p.kind == 'salu' and 'exec' in p.defs and c.kind == 'mfma': n = max(n, 0)
    return n


class Emit:
    def __init__(self):
        self.out = []
        self.hist = []
        self.lq = []
        self.vq = []
        self.nops = 0

    def raw(self, text):
        self.out.append(text)

    def comment(self, text):
        self.out.append('    ; ' + text)

    def label(self, name):
        self.out.append(name + ':')

    def _put(self, ins):
        self.out.append('    ' + ins.text)
        self.hist.append(ins)
        if len(self.hist) > 24:
            self.hist.pop(0)

    def _wait(self, vm=None, lg=None):
        parts = []
        if vm is not None:
            vm = min(vm, 63)
            if vm < len(self.vq):
                parts.append(f'vmcnt({vm})'); self.vq = self.vq[len(self.vq) - vm:] if vm else []
        if lg is not None:
            lg = min(lg, 15)
            if lg < len(self.lq):
                parts.append(f'lgkmcnt({lg})'); self.lq = self.lq[len(self.lq) - lg:] if lg else []
        if parts:
            self._put(Ins('s_waitcnt ' + ' '.join(parts)))

    def wait_tag(self, tag, lg=None):
        idx = [i for i, (d, t) in enumerate(self.vq) if t == tag]
        self._wait(vm=(len(self.vq) - 1 - idx[-1]) if idx else None, lg=lg)

    def wait_all(self, vm=True, lg=True):
        self._wait(vm=0 if vm else None, lg=0 if lg else None)

    def force(self, text):
        self._put(Ins(text))
        if 'vmcnt(0)' in text: self.vq = []
        if 'lgkmcnt(0)' in text: self.lq = []

    def __call__(self, text, tag=None):
        for line in text.strip('\n').split('\n'):
            line = line.strip()
            if not line:
                continue
            if line.endswith(':'):
                self.label(line[:-1]); continue
            self.one(line, tag)

    def one(self, text, tag=None):
        ins = Ins(text)
        touch = ins.uses | ins.defs
        vm = lg = None
        for i, (d, t) in enumerate(self.vq):
            if d & touch: vm = len(self.vq) - 1 - i
        for i, d in enumerate(self.lq):
            if d & touch: lg = len(self.lq) - 1 - i
        self._wait(vm, lg)
        dist = 0; pad = 0
        for p in reversed(self.hist):
            pad = max(pad, need_states(p, ins) - dist)
            dist += p.states
            if dist >= 20: break
        while pad > 0:
            k = min(pad, 16)
            self._put(Ins(f's_nop {k-1}')); self.nops += k; pad -= k
        self._put(ins)
        if ins.kind == 'ds':
            self.lq.append(ins.defs)
        elif ins.kind == 'vmem':
            assert len(self.vq) < 63, 'too many VMEM ops in flight'
            self.vq.append((ins.defs, tag))

    def text(self):
        return '\n'.join(self.out) + '\n'


def interleave(e, main, fill, per=None):
    def put(x):
        if callable(x): x()
        elif isinstance(x, tuple): e(x[0], x[1])
        else: e(x)
    n = len(main); k = 0
    for i, m in enumerate(main):
        put(m)
        want = (len(fill) * (i + 1) + n - 1) // n if per is None else min(len(fill), (i + 1) * per)
        while k < want:
            put(fill[k]); k += 1
    while k < len(fill):
        put(fill[k]); k += 1
```

```python
import sys, math, struct
from emit import Emit, interleave

NAME = 'standalone__dense_activation_gelu__prompt'
M, D, F = 2048, 640, 1728
H_BYTES = 128 * 54 * 1024
FLG_OFF = 8 << 20
STAMP_OFF = 16 << 20
OOB = 0x40000000

def f32(x):
    return '0x%08x' % struct.unpack('<I', struct.pack('<f', x))[0]

C0 = -2.0 * math.sqrt(2.0 / math.pi) * math.log2(math.e)
C1 = C0 * 0.044715

SX, SW1, SB1, SW2, SB2, SOUT, SDBG, SH, SFLG, SSTAMP = 20, 24, 28, 32, 36, 40, 44, 48, 52, 80
sW, sW4K, sMT, sFT, sKX, sKW, sT0, sT1, sT2, sT3 = 56, 57, 58, 59, 60, 61, 62, 63, 64, 65
sRT, sCT, sMB0, sNB, sKH, sMH, sU, sU13, sHOFF, sH13, sJ, sXCD, sSPIN, sT = 66, 67, 68, 69, 70, 71, 72, 73, 74, 75, 76, 77, 78, 79
sEX = 84
sST = 86

def S(n): return f's[{n}:{n+3}]'
def V(n, k=1): return f'v{n}' if k == 1 else f'v[{n}:{n+k-1}]'
def A(n, k=1): return f'a{n}' if k == 1 else f'a[{n}:{n+k-1}]'

vLANE = 1
vT = 2
vOX, vOW, vOW2 = 10, 14, 18
vLX, vLW = 22, 34
vOH, vOB1 = 40, 42
vC0, vC1, vONE = 44, 46, 48
vG = 50
vACC = 64
vBIAS = 128
vFA, vFB = 160, 176
vRAW = 192
vPK = 208
vLW2 = 224
vOHL, vOO, vOB2, vEXW, vEXR, vFL, vDBG, vSTO = 236, 239, 242, 243, 244, 245, 246, 247
vACC2 = 64
vB2 = 112
vF2 = 128
vRX = 160
aW2, aH = 0, 128
HDEPTH = 10


class Gen:
    def __init__(self, mode='fused', stamps=False, hflags='sc1'):
        self.mode = mode; self.stamps = stamps; self.e = Emit(); self.hflags = hflags
        self.nst = 0

    def stamp(self):
        if not self.stamps: return
        e = self.e
        e.wait_all(vm=False)
        e(f's_memrealtime s[{sST}:{sST+1}]')
        e.force('s_waitcnt lgkmcnt(0)')
        e(f'v_writelane_b32 {V(vSTO)}, s{sST}, {self.nst}')
        self.nst += 1

    def stamp_flush(self, base):
        if not self.stamps: return
        e = self.e
        e(f'''
        s_lshl_b32 s{sT0}, s2, 2
        s_add_u32 s{sT0}, s{sT0}, s{sW}
        s_lshl_b32 s{sT0}, s{sT0}, 8
        s_add_u32 s{sT0}, s{sT0}, {base}
        v_lshlrev_b32 {V(vT)}, 2, {V(vLANE)}
        buffer_store_dword {V(vSTO)}, {V(vT)}, {S(SSTAMP)}, s{sT0} offen
        ''')

    def entry(self, ptrs):
        e = self.e
        e(f's_cmp_ge_u32 s2, 256')
        e(f's_cbranch_scc1 {self.end}')
        slot = {SX: 0, SW1: 8, SB1: 16, SW2: 24, SB2: 32, SOUT: 40, SDBG: 48, SH: 56}
        size = {SX: M * D * 2, SW1: D * F * 2, SB1: F * 2, SW2: F * D * 2, SB2: D * 2, SOUT: M * D * 2, SDBG: 256, SH: H_BYTES}
        for r in ptrs:
            e(f's_load_dwordx2 s[{r}:{r+1}], s[0:1], {slot[r]}')
        if self.stamps:
            e(f's_load_dwordx2 s[{SSTAMP}:{SSTAMP+1}], s[0:1], 56')
            e(f's_mov_b32 s{SSTAMP+2}, {64 << 20}')
            e(f's_mov_b32 s{SSTAMP+3}, 0x20000')
            e(f'v_mov_b32 {V(vSTO)}, 0')
        e(f'''
        v_lshrrev_b32 {V(vT)}, 6, v0
        v_and_b32 {V(vLANE)}, 63, v0
        v_readfirstlane_b32 s{sW}, {V(vT)}
        s_and_b32 s{sXCD}, s2, 7
        s_lshr_b32 s{sJ}, s2, 3
        ''')
        for r in ptrs:
            e(f's_mov_b32 s{r+2}, {size[r]}')
            e(f's_mov_b32 s{r+3}, 0x20000')
        e(f's_lshl_b32 s{sW4K}, s{sW}, 12')

    def dma(self, voff, srd, soff, ldsbase, tag):
        ops = [f's_add_u32 m0, s{sW4K}, {ldsbase}']
        for i in range(4):
            ops.append((f'buffer_load_dwordx4 {V(voff+i)}, {S(srd)}, s{soff} offen offset:{1024*i} lds', tag))
        return ops

    def put(self, ops):
        for x in ops:
            if isinstance(x, tuple): self.e(x[0], x[1])
            else: self.e(x)

    def p1_addr_dma(self):
        e = self.e
        t = vT
        e(f'''
        s_lshr_b32 s{sMT}, s{sXCD}, 1
        s_lshl_b32 s{sMT}, s{sMT}, 2
        s_and_b32 s{sT0}, s{sJ}, 3
        s_add_u32 s{sMT}, s{sMT}, s{sT0}
        s_and_b32 s{sFT}, s{sXCD}, 1
        s_mul_i32 s{sFT}, s{sFT}, 7
        s_lshr_b32 s{sT0}, s{sJ}, 2
        s_add_u32 s{sFT}, s{sFT}, s{sT0}
        s_lshl_b32 s{sT0}, s{sMT}, 2
        s_add_u32 s{sT0}, s{sT0}, s{sW}
        s_mul_i32 s{sT0}, s{sT0}, {32*1280}
        s_mul_i32 s{sT1}, s{sW}, {16*3456}
        s_lshl_b32 s{sT2}, s{sFT}, 8
        s_add_u32 s{sT1}, s{sT1}, s{sT2}
        v_lshrrev_b32 {V(t)}, 3, {V(vLANE)}
        v_and_b32 {V(t+1)}, 7, {V(vLANE)}
        v_lshrrev_b32 {V(t+2)}, 1, {V(t)}
        v_xor_b32 {V(t+1)}, {V(t+1)}, {V(t+2)}
        v_lshlrev_b32 {V(t+1)}, 4, {V(t+1)}
        v_mul_u32_u24 {V(t)}, 1280, {V(t)}
        v_add_u32 {V(t)}, s{sT0}, {V(t)}
        v_add_u32 {V(vOX)}, {V(t)}, {V(t+1)}
        v_xor_b32 {V(t+1)}, 64, {V(t+1)}
        v_add_u32 {V(vOX+1)}, {V(t)}, {V(t+1)}
        v_add_u32 {V(vOX+1)}, {8*1280-1024}, {V(vOX+1)}
        v_add_u32 {V(vOX+2)}, {16*1280-2048}, {V(vOX)}
        v_add_u32 {V(vOX+3)}, {16*1280-2048}, {V(vOX+1)}
        v_lshrrev_b32 {V(t)}, 4, {V(vLANE)}
        v_and_b32 {V(t+1)}, 15, {V(vLANE)}
        v_lshlrev_b32 {V(t+2)}, 2, {V(t)}
        v_xor_b32 {V(t+1)}, {V(t+1)}, {V(t+2)}
        v_lshlrev_b32 {V(t+1)}, 4, {V(t+1)}
        v_mul_u32_u24 {V(t)}, 3456, {V(t)}
        v_add3_u32 {V(vOW)}, {V(t)}, {V(t+1)}, s{sT1}
        s_sub_u32 s{sT2}, 3456, s{sT2}
        v_mov_b32 {V(t+2)}, {OOB}
        v_cmp_gt_u32 vcc, s{sT2}, {V(t+1)}
        v_cndmask_b32 {V(vOW)}, {V(t+2)}, {V(vOW)}, vcc
        v_add_u32 {V(vOW+1)}, 12800, {V(vOW)}
        v_add_u32 {V(vOW+2)}, {2*12800}, {V(vOW)}
        v_add_u32 {V(vOW+3)}, {3*12800}, {V(vOW)}
        s_lshr_b32 s{sT2}, s{sW}, 1
        s_lshl_b32 s{sT2}, s{sT2}, 6
        s_lshl_b32 s{sT3}, s{sFT}, 7
        s_add_u32 s{sT2}, s{sT2}, s{sT3}
        s_lshl_b32 s{sT3}, s{sT2}, 1
        v_lshrrev_b32 {V(t)}, 5, {V(vLANE)}
        v_lshlrev_b32 {V(t)}, 3, {V(t)}
        v_add_u32 {V(vOB1)}, s{sT3}, {V(t)}
        s_mov_b32 s{sKX}, 0
        s_mov_b32 s{sKW}, 0
        ''')

    def p1_stage_dma(self, s):
        sl = (s % 5) * 32768
        ops = self.dma(vOX, SX, sKX, sl, ('st', s)) + self.dma(vOW, SW1, sKW, sl + 16384, ('st', s))
        ops += [f's_add_u32 s{sKX}, s{sKX}, 128', f's_add_u32 s{sKW}, s{sKW}, {64*3456}']
        return ops

    def p1_addr_rest(self):
        e = self.e; t = vT
        e(f'''
        s_and_b32 s{sT0}, s{sW}, 1
        s_lshr_b32 s{sT1}, s{sW}, 1
        s_lshl_b32 s{sT2}, s{sT0}, 13
        v_and_b32 {V(t)}, 31, {V(vLANE)}
        v_lshrrev_b32 {V(t+1)}, 5, {V(vLANE)}
        v_bfe_u32 {V(t+2)}, {V(vLANE)}, 1, 3
        v_lshlrev_b32 {V(t)}, 7, {V(t)}
        v_add_u32 {V(t)}, s{sT2}, {V(t)}
        ''')
        for kk in range(4):
            e(f'''
            v_or_b32 {V(t+3)}, {2*kk}, {V(t+1)}
            v_xor_b32 {V(t+3)}, {V(t+3)}, {V(t+2)}
            v_lshl_add_u32 {V(vLX+kk)}, {V(t+3)}, 4, {V(t)}
            ''')
        e(f'''
        v_bfe_u32 {V(t)}, {V(vLANE)}, 2, 2
        v_lshl_add_u32 {V(t+2)}, {V(t+1)}, 3, {V(t)}
        v_lshlrev_b32 {V(t+2)}, 8, {V(t+2)}
        v_bfe_u32 {V(t+3)}, {V(vLANE)}, 4, 1
        v_bfe_u32 {V(t+4)}, {V(vLANE)}, 1, 1
        v_lshl_add_u32 {V(t+3)}, {V(t+3)}, 1, {V(t+4)}
        v_lshl_add_u32 {V(t+2)}, {V(t+3)}, 4, {V(t+2)}
        v_and_b32 {V(t+3)}, 1, {V(vLANE)}
        v_lshl_add_u32 {V(t+2)}, {V(t+3)}, 3, {V(t+2)}
        v_add_u32 {V(t+2)}, 16384, {V(t+2)}
        s_lshl_b32 s{sT2}, s{sT1}, 1
        ''')
        for fb in range(2):
            e(f'''
            s_add_u32 s{sT3}, s{sT2}, {fb}
            v_xor_b32 {V(t+3)}, s{sT3}, {V(t)}
            v_lshl_add_u32 {V(vLW+fb)}, {V(t+3)}, 6, {V(t+2)}
            ''')
        for st in (1, 2):
            for k in range(4): e(f'v_add_u32 {V(vLX+4*st+k)}, {65536*st}, {V(vLX+k)}')
            for k in range(2): e(f'v_add_u32 {V(vLW+2*st+k)}, {65536*st}, {V(vLW+k)}')
        e(f'''
        s_lshl_b32 s{sT2}, s{sMT}, 3
        s_lshl_b32 s{sT3}, s{sT0}, 2
        s_add_u32 s{sT2}, s{sT2}, s{sT3}
        s_mul_i32 s{sT2}, s{sT2}, 54
        s_lshl_b32 s{sT3}, s{sFT}, 2
        s_add_u32 s{sT2}, s{sT2}, s{sT3}
        s_lshl_b32 s{sT3}, s{sT1}, 1
        s_add_u32 s{sT2}, s{sT2}, s{sT3}
        s_lshl_b32 s{sT2}, s{sT2}, 10
        s_lshl_b32 s{sT3}, s{sFT}, 1
        s_add_u32 s{sT3}, s{sT3}, s{sT1}
        s_cmp_ge_u32 s{sT3}, 27
        s_cselect_b32 s{sT2}, {OOB}, s{sT2}
        v_bfe_u32 {V(t)}, {V(vLANE)}, 4, 1
        v_mul_u32_u24 {V(t)}, {54*1024}, {V(t)}
        v_and_b32 {V(t+2)}, 15, {V(vLANE)}
        v_lshl_add_u32 {V(t+2)}, {V(t+1)}, 4, {V(t+2)}
        v_lshl_add_u32 {V(t)}, {V(t+2)}, 4, {V(t)}
        v_add_u32 {V(vOH)}, s{sT2}, {V(t)}
        v_add_u32 {V(vOH+1)}, {2*54*1024}, {V(vOH)}
        v_mov_b32 {V(vC0)}, {f32(C0)}
        v_mov_b32 {V(vC0+1)}, {f32(C0)}
        v_mov_b32 {V(vC1)}, {f32(C1)}
        v_mov_b32 {V(vC1+1)}, {f32(C1)}
        v_mov_b32 {V(vONE)}, 1.0
        v_mov_b32 {V(vONE+1)}, 1.0
        ''')

    def p1_reads(self, t):
        s, kk = divmod(t, 4)
        sl = s % 5; st = sl // 2; off = (sl % 2) * 32768
        b = t & 1
        fa = vFA + 8 * b; fbb = vFB + 8 * b
        r = []
        def ra(fb):
            for jh in range(2):
                r.append(f'ds_read_b64_tr_b16 {V(fa+4*fb+2*jh, 2)}, {V(vLW+2*st+fb)} offset:{off + (16*kk+4*jh)*256}')
        def rb(mb):
            r.append(f'ds_read_b128 {V(fbb+4*mb, 4)}, {V(vLX+4*st+kk)} offset:{off + 4096*mb}')
        ra(0); rb(0); rb(1); ra(1)
        return r

    def p1_mfmas(self, t):
        b = t & 1
        fa = vFA + 8 * b; fbb = vFB + 8 * b
        r = []
        for fb, mb in ((0, 0), (0, 1), (1, 0), (1, 1)):
            acc = vACC + 16 * (2 * fb + mb)
            c = V(vBIAS + 16 * fb, 16) if t == 0 else V(acc, 16)
            r.append(f'v_mfma_f32_32x32x16_bf16 {V(acc,16)}, {V(fa+4*fb,4)}, {V(fbb+4*mb,4)}, {c}')
        return r

    def gelu8(self, x, pk):
        g = vG; r = []
        P = lambda n: V(n, 2)
        for j in range(4): r.append(f'v_pk_mul_f32 {P(g+2*j)}, {P(x+2*j)}, {P(x+2*j)}')
        for j in range(4): r.append(f'v_pk_fma_f32 {P(g+2*j)}, {P(g+2*j)}, {P(vC1)}, {P(vC0)}')
        for j in range(4): r.append(f'v_pk_mul_f32 {P(g+2*j)}, {P(x+2*j)}, {P(g+2*j)}')
        for j in range(8): r.append(f'v_exp_f32 {V(g+j)}, {V(g+j)}')
        for j in range(4): r.append(f'v_pk_add_f32 {P(g+2*j)}, {P(g+2*j)}, {P(vONE)}')
        for j in range(8): r.append(f'v_rcp_f32 {V(g+j)}, {V(g+j)}')
        for j in range(4): r.append(f'v_pk_mul_f32 {P(g+2*j)}, {P(x+2*j)}, {P(g+2*j)}')
        for j in range(4): r.append(f'v_cvt_pk_bf16_f32 {V(pk+j)}, {V(g+2*j)}, {V(g+2*j+1)}')
        return r

    def phase1(self, fused):
        e = self.e
        self.p1_addr_dma()
        e.force('s_waitcnt lgkmcnt(0)')
        self.stamp()
        self.put(self.p1_stage_dma(0))
        for fb in range(2):
            for q in range(4):
                e(f'buffer_load_dwordx2 {V(vRAW+8*fb+2*q,2)}, {V(vOB1)}, {S(SB1)}, 0 offen offset:{(32*fb+8*q)*2}')
        for s in range(1, 5):
            self.put(self.p1_stage_dma(s))
        self.p1_addr_rest()
        if fused:
            self.p2_addr()
        for i in range(16):
            e(f'v_lshlrev_b32 {V(vBIAS+2*i)}, 16, {V(vRAW+i)}')
            e(f'v_and_b32 {V(vBIAS+2*i+1)}, 0xffff0000, {V(vRAW+i)}')
        e.wait_tag(('st', 0))
        e('s_barrier')
        self.stamp()
        self.put(self.p1_reads(0))
        for t in range(40):
            mf = self.p1_mfmas(t)
            nxt = t + 1
            if nxt % 4 == 0:
                s = nxt // 4
                e.wait_all(vm=False)
                if s < 10:
                    e.wait_tag(('st', s))
                elif fused:
                    e.wait_tag(('u', 3))
                if s < 10 or fused:
                    e('s_barrier')
                fill = self.p1_reads(nxt) if s < 10 else []
                if s + 4 < 10:
                    fill = fill + self.p1_stage_dma(s + 4)
                elif fused:
                    u = 2 * (s - 6)
                    fill = fill + self.w2_dma(u) + self.w2_dma(u + 1)
                interleave(e, mf, fill)
            else:
                interleave(e, mf, self.p1_reads(nxt), per=2)
        self.stamp()
        extra = self.w2_readout() if fused else []
        if fused:
            e(f'v_mov_b32 {V(vT)}, 0')
            e(f'buffer_load_dword {V(vDBG)}, {V(vT)}, {S(SDBG)}, 0 offen sc1')
        n = 0
        for fb in range(2):
            for mb in range(2):
                for p in range(2):
                    pk = vPK + 4 * (n % 4)
                    body = self.gelu8(vACC + 16 * (2 * fb + mb) + 8 * p, pk)
                    interleave(e, body, extra[8 * n: 8 * n + 8])
                    e(f'buffer_store_dwordx4 {V(pk,4)}, {V(vOH+mb)}, {S(SH)}, 0 offen offset:{fb*1024+p*512} {self.hflags if fused else ""}', 'hst')
                    n += 1
        self.stamp()

    def p2_addr(self):
        e = self.e; t = vT
        e(f'''
        s_lshl_b32 s{sT}, s{sXCD}, 5
        s_add_u32 s{sT}, s{sT}, s{sJ}
        s_mul_i32 s{sRT}, s{sT}, 205
        s_lshr_b32 s{sRT}, s{sRT}, 11
        s_mul_i32 s{sT0}, s{sRT}, 10
        s_sub_u32 s{sCT}, s{sT}, s{sT0}
        s_mul_i32 s{sMB0}, s{sRT}, 5
        s_max_u32 s{sT0}, s{sRT}, 22
        s_sub_u32 s{sT0}, s{sT0}, 22
        s_add_u32 s{sMB0}, s{sMB0}, s{sT0}
        s_cmp_ge_u32 s{sRT}, 22
        s_cselect_b32 s{sNB}, 6, 5
        s_lshr_b32 s{sKH}, s{sW}, 1
        s_and_b32 s{sMH}, s{sW}, 1
        s_mul_i32 s{sT0}, s{sW}, {32*1280}
        s_lshl_b32 s{sT1}, s{sCT}, 7
        s_add_u32 s{sT0}, s{sT0}, s{sT1}
        v_lshrrev_b32 {V(t)}, 3, {V(vLANE)}
        v_and_b32 {V(t+1)}, 7, {V(vLANE)}
        v_and_b32 {V(t+2)}, 6, {V(t)}
        v_xor_b32 {V(t+1)}, {V(t+1)}, {V(t+2)}
        v_lshlrev_b32 {V(t+1)}, 4, {V(t+1)}
        v_mul_u32_u24 {V(t)}, 1280, {V(t)}
        v_add3_u32 {V(vOW2)}, {V(t)}, {V(t+1)}, s{sT0}
        v_add_u32 {V(vOW2+1)}, 9216, {V(vOW2)}
        v_add_u32 {V(vOW2+2)}, {2*9216}, {V(vOW2)}
        v_add_u32 {V(vOW2+3)}, {3*9216}, {V(vOW2)}
        s_mov_b32 s{sU}, 0
        s_sub_u32 s{sT0}, s{sW}, s{sKH}
        s_mul_i32 s{sT0}, s{sT0}, {32*1280}
        s_sub_u32 s{sU13}, {13*163840}, s{sT0}
        s_lshl_b32 s{sT0}, s{sKH}, 10
        s_sub_u32 s{sH13}, {13*4096}, s{sT0}
        ''')
        e(f'''
        v_bfe_u32 {V(t)}, {V(vLANE)}, 2, 2
        v_bfe_u32 {V(t+1)}, {V(vLANE)}, 4, 1
        v_lshrrev_b32 {V(t+2)}, 5, {V(vLANE)}
        v_lshl_add_u32 {V(t)}, {V(t+1)}, 2, {V(t)}
        v_lshl_add_u32 {V(t+2)}, {V(t+2)}, 4, {V(t)}
        v_lshrrev_b32 {V(t)}, 1, {V(t)}
        v_lshlrev_b32 {V(t+2)}, 7, {V(t+2)}
        v_and_b32 {V(t+3)}, 3, {V(vLANE)}
        v_lshl_add_u32 {V(t+2)}, {V(t+3)}, 3, {V(t+2)}
        s_lshl_b32 s{sT0}, s{sKH}, 13
        v_add_u32 {V(t+2)}, s{sT0}, {V(t+2)}
        s_lshl_b32 s{sT1}, s{sKH}, 1
        ''')
        for d in range(4):
            e(f'''
            s_xor_b32 s{sT2}, s{sT1}, {d}
            v_xor_b32 {V(t+3)}, s{sT2}, {V(t)}
            v_lshl_add_u32 {V(vLW2+d)}, {V(t+3)}, 5, {V(t+2)}
            ''')
        for st in (1, 2):
            for d in range(4): e(f'v_add_u32 {V(vLW2+4*st+d)}, {65536*st}, {V(vLW2+d)}')
        e(f'''
        s_mul_i32 s{sT0}, s{sMH}, 3
        s_add_u32 s{sT1}, s{sMB0}, s{sT0}
        v_lshlrev_b32 {V(t)}, 4, {V(vLANE)}
        v_and_b32 {V(t+1)}, 15, {V(vLANE)}
        v_mul_u32_u24 {V(t+1)}, 1280, {V(t+1)}
        v_bfe_u32 {V(t+2)}, {V(vLANE)}, 4, 1
        v_lshl_add_u32 {V(t+1)}, {V(t+2)}, 5, {V(t+1)}
        v_lshrrev_b32 {V(t+2)}, 5, {V(vLANE)}
        v_lshl_add_u32 {V(t+1)}, {V(t+2)}, 4, {V(t+1)}
        ''')
        for b in range(3):
            e(f'''
            s_add_u32 s{sT2}, s{sT1}, {b}
            s_mul_i32 s{sT3}, s{sT2}, {54*1024}
            s_lshl_b32 s{sHOFF}, s{sKH}, 11
            s_add_u32 s{sT3}, s{sT3}, s{sHOFF}
            s_mul_i32 s{sT2}, s{sT2}, {16*1280}
            s_lshl_b32 s{sHOFF}, s{sCT}, 7
            s_add_u32 s{sT2}, s{sT2}, s{sHOFF}
            s_lshl_b32 s{sHOFF}, s{sKH}, 6
            s_add_u32 s{sT2}, s{sT2}, s{sHOFF}
            s_add_u32 s{sHOFF}, s{sT0}, {b}
            s_cmp_lt_u32 s{sHOFF}, s{sNB}
            s_cselect_b32 s{sT3}, s{sT3}, {OOB}
            s_cselect_b32 s{sT2}, s{sT2}, {OOB}
            v_add_u32 {V(vOHL+b)}, s{sT3}, {V(t)}
            v_add_u32 {V(vOO+b)}, s{sT2}, {V(t+1)}
            ''')
        e(f'''
        s_lshl_b32 s{sT2}, s{sCT}, 7
        s_lshl_b32 s{sT3}, s{sKH}, 6
        s_add_u32 s{sT2}, s{sT2}, s{sT3}
        v_lshrrev_b32 {V(t+1)}, 4, {V(vLANE)}
        v_lshlrev_b32 {V(t+1)}, 3, {V(t+1)}
        v_add_u32 {V(vOB2)}, s{sT2}, {V(t+1)}
        s_mul_i32 s{sT2}, s{sW}, 6144
        s_add_u32 s{sT2}, s{sT2}, {4*16384}
        v_add_u32 {V(vEXW)}, s{sT2}, {V(t)}
        s_xor_b32 s{sT2}, s{sW}, 2
        s_mul_i32 s{sT2}, s{sT2}, 6144
        s_add_u32 s{sT2}, s{sT2}, {4*16384}
        v_add_u32 {V(vEXR)}, s{sT2}, {V(t)}
        ''')
        e(f'''
        s_lshr_b32 s{sT2}, s{sT1}, 3
        s_add_u32 s{sT3}, s{sT1}, 2
        s_min_u32 s{sT3}, s{sT3}, 127
        s_lshr_b32 s{sT3}, s{sT3}, 3
        s_sub_u32 s{sT3}, s{sT3}, s{sT2}
        s_lshl_b32 s{sT2}, s{sT2}, 8
        s_lshl_b32 s{sT3}, s{sT3}, 8
        v_and_b32 {V(t+1)}, 15, {V(vLANE)}
        v_min_u32 {V(t+1)}, 13, {V(t+1)}
        v_lshlrev_b32 {V(t+1)}, 2, {V(t+1)}
        v_bfe_u32 {V(t+2)}, {V(vLANE)}, 4, 1
        v_mul_u32_u24 {V(t+2)}, s{sT3}, {V(t+2)}
        v_add3_u32 {V(vFL)}, {V(t+1)}, {V(t+2)}, s{sT2}
        ''')

    def w2_slot(self, u):
        return u if u < 10 else u - 10

    def w2_dma(self, u):
        so = sU13 if u == 13 else sU
        ops = self.dma(vOW2, SW2, so, self.w2_slot(u) * 16384, ('u', u))
        if u < 12:
            ops.append(f's_add_u32 s{sU}, s{sU}, 163840')
        return ops

    def w2_reads(self, u, t, dst):
        z = self.w2_slot(u); st = z // 4; off = (z % 4) * 16384 + t * 4096
        return [f'ds_read_b64_tr_b16 {dst(d, jh)}, {V(vLW2+4*st+d)} offset:{off + 1024*jh}' for d in range(4) for jh in range(2)]

    def w2_readout(self):
        r = []
        for u in range(4):
            for t in range(2):
                base = aW2 + 16 * (2 * u + t)
                r += self.w2_reads(u, t, lambda d, jh: A(base + 4 * d + 2 * jh, 2))
        return r

    def steps(self):
        return [(u, t) for u in range(13) for t in range(2)] + [(13, 0)]

    def h_loads(self, n):
        u, t = self.steps()[n]
        base = aH + 12 * (n % HDEPTH)
        ops = []
        if t == 0:
            ops.append(f's_mov_b32 s{sHOFF}, {u*4096}' if u < 13 else f's_mov_b32 s{sHOFF}, s{sH13}')
        fl = self.hflags if self.mode == 'fused' else ''
        for b in range(3):
            ops.append(f'buffer_load_dwordx4 {A(base+4*b,4)}, {V(vOHL+b)}, {S(SH)}, s{sHOFF} offen offset:{1024*t} {fl}')
        return ops

    def b2_load(self):
        e = self.e
        for d in range(2):
            e(f'buffer_load_dwordx2 {V(vRAW+2*d,2)}, {V(vOB2)}, {S(SB2)}, 0 offen offset:{32*d}')

    def b2_unpack(self):
        e = self.e
        for i in range(4):
            e(f'v_lshlrev_b32 {V(vB2+2*i)}, 16, {V(vRAW+i)}')
            e(f'v_and_b32 {V(vB2+2*i+1)}, 0xffff0000, {V(vRAW+i)}')

    def p2_standalone_prologue(self):
        e = self.e
        for u in range(10): self.put(self.w2_dma(u))
        e.wait_tag(('u', 3))
        e('s_barrier')
        self.put(self.w2_readout())
        e.wait_all(vm=False)
        e('s_barrier')
        for u in range(10, 14): self.put(self.w2_dma(u))
        self.b2_load()

    def phase2(self):
        e = self.e
        st = self.steps()
        for n in range(HDEPTH - 1): self.put(self.h_loads(n))
        self.b2_unpack()
        self.stamp()
        for n, (u, t) in enumerate(st):
            fill = []
            if n + HDEPTH - 1 < len(st): hl = self.h_loads(n + HDEPTH - 1)
            else: hl = []
            if n + 1 < len(st) and st[n + 1][0] >= 4:
                if st[n + 1] == (4, 0) and self.mode != 'fused':
                    pass
                if st[n + 1] == (6, 0):
                    fill.append(lambda: (e.wait_all(vm=False), e.wait_tag(('u', 13)), e('s_barrier')))
                bb = vF2 + 16 * ((n + 1) & 1)
                fill += self.w2_reads(st[n + 1][0], st[n + 1][1], lambda d, jh: V(bb + 4 * d + 2 * jh, 2))
            mf = []
            for d in range(4):
                for b in range(3):
                    acc = vACC2 + 16 * b + 4 * d
                    wa = A(aW2 + 16 * n + 4 * d, 4) if u < 4 else V(vF2 + 16 * (n & 1) + 4 * d, 4)
                    c = V(acc, 4) if n else (V(vB2 + 4 * d, 4) if d < 2 else '0')
                    mf.append(f'v_mfma_f32_16x16x32_bf16 {V(acc,4)}, {wa}, {A(aH + 12*(n % HDEPTH) + 4*b, 4)}, {c}')
            interleave(e, mf[:11], fill + hl, per=1)
            e(mf[11])
        self.stamp()
        for b in range(3):
            for k in range(2):
                e(f'ds_write_b128 {V(vEXW)}, {V(vACC2+16*b+4*(2+k),4)} offset:{(2*b+k)*1024}')
        e.wait_all(vm=False)
        e('s_barrier')
        for b in range(3):
            for k in range(2):
                e(f'ds_read_b128 {V(vRX+8*b+4*k,4)}, {V(vEXR)} offset:{(2*b+k)*1024}')
        for b in range(3):
            a0 = vACC2 + 16 * b
            for j in range(4):
                e(f'v_pk_add_f32 {V(a0+2*j,2)}, {V(a0+2*j,2)}, {V(vRX+8*b+2*j,2)}')
            pk = vPK + 4 * b
            for j in range(4):
                e(f'v_cvt_pk_bf16_f32 {V(pk+j)}, {V(a0+2*j)}, {V(a0+2*j+1)}')
            e(f'v_permlane16_swap_b32 {V(pk)}, {V(pk+2)}')
            e(f'v_permlane16_swap_b32 {V(pk+1)}, {V(pk+3)}')
            e(f'buffer_store_dwordx4 {V(pk,4)}, {V(vOO+b)}, {S(SOUT)}, 0 offen')
        if self.stamps:
            e.wait_all()
        self.stamp()

    def spin(self, label, load, check):
        e = self.e
        e(f's_mov_b32 s{sSPIN}, 0')
        e.label(label)
        e(load)
        e.force('s_waitcnt vmcnt(0)')
        e(check)
        e(f's_cbranch_vccz {label}_ok')
        e(f's_add_u32 s{sSPIN}, s{sSPIN}, 1')
        e(f's_cmp_lt_u32 s{sSPIN}, 200000')
        e(f's_cbranch_scc1 {label}')
        e.label(label + '_ok')

    def flg_srd(self):
        self.e(f'''
        s_add_u32 s{SFLG}, s{SH}, {FLG_OFF}
        s_addc_u32 s{SFLG+1}, s{SH+1}, 0
        s_mov_b32 s{SFLG+2}, 4096
        s_mov_b32 s{SFLG+3}, 0x20000
        ''')

    def fused(self):
        e = self.e
        self.end = 'L_end'
        self.entry([SX, SW1, SB1, SW2, SB2, SOUT, SDBG, SH])
        e(f's_cmp_ge_u32 s{sJ}, 28')
        e('s_cbranch_scc1 L_idle1')
        self.phase1(True)
        e.wait_all(vm=False)
        e('s_barrier')
        for u in range(10, 14): self.put(self.w2_dma(u))
        self.b2_load()
        self.flg_srd()
        e.wait_tag('hst')
        e('s_barrier')
        self.stamp()
        e(f'v_cmp_eq_u32 vcc, 0, {V(vDBG)}')
        e('s_cbranch_vccz L_dbg_ok')
        e(f'v_mov_b32 {V(vT)}, 0')
        self.spin('L_dbg', f'buffer_load_dword {V(vDBG)}, {V(vT)}, {S(SDBG)}, 0 offen sc1', f'v_cmp_eq_u32 vcc, 0, {V(vDBG)}')
        e(f'''
        s_cmp_lg_u32 s{sW}, 0
        s_cbranch_scc1 L_noflag
        s_lshl_b32 s{sT0}, s{sMT}, 8
        s_lshl_b32 s{sT1}, s{sFT}, 2
        s_add_u32 s{sT0}, s{sT0}, s{sT1}
        v_mov_b32 {V(vT)}, 0
        v_mov_b32 {V(vT+1)}, 1
        s_mov_b64 s[{sEX}:{sEX+1}], exec
        s_mov_b64 exec, 1
        buffer_store_dword {V(vT+1)}, {V(vT)}, {S(SFLG)}, s{sT0} offen sc1
        s_mov_b64 exec, s[{sEX}:{sEX+1}]
        L_noflag:
        s_cmp_ge_u32 s{sT}, 250
        s_cbranch_scc1 L_fin
        s_branch L_poll0
        ''')
        nst_join = self.nst
        e.label('L_idle1')
        e.vq = []; e.lq = []; e.hist = []
        e.force('s_waitcnt lgkmcnt(0)')
        self.flg_srd()
        e(f'''
        s_cmp_lg_u32 s2, 224
        s_cbranch_scc1 L_noclear
        s_cmp_lg_u32 s{sW}, 0
        s_cbranch_scc1 L_noclear
        v_lshrrev_b32 {V(vT)}, 2, {V(vLANE)}
        v_lshlrev_b32 {V(vT)}, 8, {V(vT)}
        v_and_b32 {V(vT+1)}, 3, {V(vLANE)}
        v_lshl_add_u32 {V(vT)}, {V(vT+1)}, 4, {V(vT)}
        v_mov_b32 {V(vT+2)}, 0
        v_mov_b32 {V(vT+3)}, 0
        v_mov_b32 {V(vT+4)}, 0
        v_mov_b32 {V(vT+5)}, 0
        buffer_store_dwordx4 {V(vT+2,4)}, {V(vT)}, {S(SFLG)}, 0 offen sc1
        ''')
        e.force('s_waitcnt vmcnt(0)')
        e(f'''
        v_mov_b32 {V(vT+6)}, 1
        s_mov_b64 s[{sEX}:{sEX+1}], exec
        s_mov_b64 exec, 1
        buffer_store_dword {V(vT+6)}, {V(vT+2)}, {S(SDBG)}, 0 offen sc1
        s_mov_b64 exec, s[{sEX}:{sEX+1}]
        ''')
        e.force('s_waitcnt vmcnt(0)')
        e.label('L_noclear')
        self.p2_addr()
        e(f's_cmp_ge_u32 s{sT}, 250')
        e('s_cbranch_scc1 L_fin')
        self.p2_standalone_prologue()
        e.wait_tag(('u', 9))
        e('s_barrier')
        e(f'v_mov_b32 {V(vT)}, 0')
        self.spin('L_dbg2', f'buffer_load_dword {V(vDBG)}, {V(vT)}, {S(SDBG)}, 0 offen sc1', f'v_cmp_eq_u32 vcc, 0, {V(vDBG)}')
        e.label('L_poll0')
        self.nst = nst_join
        self.spin('L_poll', f'buffer_load_dword {V(vDBG)}, {V(vFL)}, {S(SFLG)}, 0 offen sc1', f'v_cmp_ne_u32 vcc, 1, {V(vDBG)}')
        self.stamp()
        self.phase2()
        e.label('L_fin')
        self.stamp_flush(STAMP_OFF)
        e.label('L_end')
        e('s_endpgm')

    def two(self):
        e = self.e
        e.raw(begin('k1_kernel'))
        self.end = 'L_end1'
        self.entry([SX, SW1, SB1, SH])
        e(f's_cmp_ge_u32 s{sJ}, 28')
        e('s_cbranch_scc1 L_end1')
        self.phase1(False)
        if self.stamps:
            e.wait_all(); self.stamp(); self.stamp_flush(STAMP_OFF)
        e.label('L_end1')
        e('s_endpgm')
        e.vq = []; e.lq = []; e.hist = []; self.nst = 0
        e.raw(begin('k2_kernel'))
        self.end = 'L_end2'
        self.entry([SW2, SB2, SOUT, SH])
        self.p2_addr()
        e(f's_cmp_ge_u32 s{sT}, 250')
        e('s_cbranch_scc1 L_end2')
        e.force('s_waitcnt lgkmcnt(0)')
        self.stamp()
        self.p2_standalone_prologue()
        e.wait_tag(('u', 9))
        e('s_barrier')
        self.phase2()
        self.stamp_flush(STAMP_OFF + (1 << 20))
        e.label('L_end2')
        e('s_endpgm')


def begin(name):
    return f'.globl {name}\n.p2align 8\n.type {name},@function\n{name}:'

def desc(name):
    return f'''.p2align 6
.amdhsa_kernel {name}
  .amdhsa_next_free_vgpr 512
  .amdhsa_next_free_sgpr 96
  .amdhsa_accum_offset 256
  .amdhsa_group_segment_fixed_size 0
  .amdhsa_kernarg_size 64
  .amdhsa_user_sgpr_count 2
  .amdhsa_user_sgpr_kernarg_segment_ptr 1
  .amdhsa_system_sgpr_workgroup_id_x 1
.end_amdhsa_kernel
'''

HEAD = '''; out = gelu_tanh(x @ w1 + b1) @ w2 + b2, x (2048,640), w1 (640,1728), w2 (1728,640), all bf16.
'''

def generate(mode='fused', stamps=False, **kw):
    g = Gen(mode, stamps, **kw)
    if mode == 'fused':
        k = NAME + '_kernel'
        head = HEAD + '; @launch grid=(256,1,1) block=(256,1,1) lds=163840\n'
        g.e.raw(begin(k)); g.fused(); names = [k]
    else:
        head = HEAD + '; @launch kernel=k1_kernel grid=(256,1,1) block=(256,1,1) lds=163840\n; @launch kernel=k2_kernel grid=(256,1,1) block=(256,1,1) lds=163840\n'
        g.two(); names = ['k1_kernel', 'k2_kernel']
    txt = head + '.amdgcn_target "amdgcn-amd-amdhsa--gfx950"\n.text\n' + g.e.text()
    txt += '.section .rodata,"a"\n' + ''.join(desc(n) for n in names)
    return txt

if __name__ == '__main__':
    mode = sys.argv[1]; out = sys.argv[2]; stamps = len(sys.argv) > 3 and sys.argv[3] == 'stamps'
    open(out, 'w').write(generate(mode, stamps))
```

```python
import sys, math, struct, copy
from emit import Emit, interleave

NAME = 'standalone__dense_activation_gelu__prompt'
M, D, F = 2048, 640, 1728
H_BYTES = 128 * 54 * 1024
FLG_OFF = 8 << 20
STAMP_OFF = 16 << 20
OOB = 0x40000000

def f32(x):
    return '0x%08x' % struct.unpack('<I', struct.pack('<f', x))[0]

C0 = -2.0 * math.sqrt(2.0 / math.pi) * math.log2(math.e)
C1 = C0 * 0.044715

sHS = 4
SX, SW1, SB1, SW2, SB2, SOUT, SDBG, SH, SFLG, SSTAMP = 20, 24, 28, 32, 36, 40, 44, 48, 52, 80
sW, sW4K, sMT, sFT, sKX, sKW, sT0, sT1, sT2, sT3 = 56, 57, 58, 59, 60, 61, 62, 63, 64, 65
sRT, sCT, sMB0, sNB, sU, sU13, sJ, sXCD, sSPIN, sT = 66, 67, 68, 69, 70, 71, 72, 73, 74, 75
sMB1, sMB2, sMB3, sSTEP5 = 76, 77, 78, 79
sEX, sST = 84, 86

def S(n): return f's[{n}:{n+3}]'
def V(n, k=1): return f'v{n}' if k == 1 else f'v[{n}:{n+k-1}]'
def A(n, k=1): return f'a{n}' if k == 1 else f'a[{n}:{n+k-1}]'

vLANE = 1
vT = 2
vOX, vOW, vOW2 = 10, 14, 18
vLX, vLW = 22, 28
vOH, vOB1 = 40, 41
vC0, vC1, vONE = 42, 44, 46
vG = 48
vB2 = 56
vRAW2 = 60
vACC = 64
vBIAS = 128
vRAW = 144
vF = 160
vPK = 128
vLW2 = 224
vOHL, vOH13, vOO, vOB2, vEXW, vEXR, vFL, vDBG, vSTO = 236, 237, 238, 239, 240, 242, 243, 244, 245
vACC2 = 64
vRX = 96
vPK2 = 112
vH = 160


class Gen:
    def __init__(self, stamps=False, hflags='sc1', rot1=(10, 6, 5), rot2=(10, 8), pre1=2, la=9, hpre=4,
                 plan=None, oflags='', touch=True, mapb=False, htouch=False, fine='', psleep=4, ro=None, fsh=7):
        self.stamps = stamps; self.e = Emit(); self.hflags = hflags; self.nst = 0
        self.rot1 = rot1; self.rot2 = rot2; self.pre1 = pre1; self.la = la; self.hpre = hpre; self.oflags = oflags
        self.touch = touch; self.mapb = mapb; self.fine = fine; self.psleep = psleep; self.fsh = fsh; self.htouch = htouch
        self.plan = plan or dict([(0, 8), (1, 8), (2, 9), (3, 9), (4, 'post'), (5, 'post')] + [(u, 'late') for u in range(6, 14)])
        order = {'g0': 10, 'g1': 11, 'post': 12, 'late': 13}
        pos = [order.get(self.plan[u], self.plan[u]) for u in range(14)]
        assert pos == sorted(pos) and all(pos[u] >= 6 + u // 2 for u in range(8)) and pos[12] == 13 and 2 <= pre1 <= 4
        self.readout_done = set()
        self.ro = ro or {'g0': [], 'g1': [], 'post': [0, 1, 2, 3], 'late': [4, 5, 6, 7, 8, 9], 'b0': [10, 11, 12, 13]}

    def stamp(self):
        if not self.stamps: return
        e = self.e
        e.wait_all(vm=False)
        e(f's_memrealtime s[{sST}:{sST+1}]')
        e(f's_memtime s[90:91]')
        e.force('s_waitcnt lgkmcnt(0)')
        e(f'v_writelane_b32 {V(vSTO)}, s{sST}, {self.nst}')
        e(f'v_writelane_b32 {V(vSTO)}, s90, {32 + self.nst}')
        self.nst += 1

    def stamp_flush(self):
        if not self.stamps: return
        self.e(f'''
        s_lshl_b32 s{sT0}, s2, 2
        s_add_u32 s{sT0}, s{sT0}, s{sW}
        s_lshl_b32 s{sT0}, s{sT0}, 8
        s_add_u32 s{sT0}, s{sT0}, {STAMP_OFF}
        v_lshlrev_b32 {V(vT)}, 2, {V(vLANE)}
        buffer_store_dword {V(vSTO)}, {V(vT)}, {S(SSTAMP)}, s{sT0} offen
        ''')

    def entry(self):
        e = self.e
        e('s_cmp_ge_u32 s2, 256')
        e('s_cbranch_scc1 L_end')
        slot = {SX: 0, SW1: 8, SB1: 16, SW2: 24, SB2: 32, SOUT: 40, SDBG: 48, SH: 56}
        size = {SX: M * D * 2, SW1: D * F * 2, SB1: F * 2, SW2: F * D * 2, SB2: D * 2, SOUT: M * D * 2, SDBG: 256, SH: H_BYTES}
        for r in slot:
            e(f's_load_dwordx2 s[{r}:{r+1}], s[0:1], {slot[r]}')
        if self.stamps:
            e(f's_load_dwordx2 s[{SSTAMP}:{SSTAMP+1}], s[0:1], 56')
            e(f's_mov_b32 s{SSTAMP+2}, {64 << 20}')
            e(f's_mov_b32 s{SSTAMP+3}, 0x20000')
            e(f'v_mov_b32 {V(vSTO)}, 0')
        e(f'''
        v_lshrrev_b32 {V(vT)}, 6, v0
        v_and_b32 {V(vLANE)}, 63, v0
        v_readfirstlane_b32 s{sW}, {V(vT)}
        s_and_b32 s{sXCD}, s2, 7
        s_lshr_b32 s{sJ}, s2, 3
        ''')
        for r in slot:
            e(f's_mov_b32 s{r+2}, {size[r]}')
            e(f's_mov_b32 s{r+3}, 0x20000')
        e(f's_lshl_b32 s{sW4K}, s{sW}, 12')

    def dma(self, voff, srd, soff, ldsbase, tag):
        ops = [f's_add_u32 m0, s{sW4K}, {ldsbase}']
        for i in range(4):
            ops.append((f'buffer_load_dwordx4 {V(voff+i)}, {S(srd)}, s{soff} offen offset:{1024*i} lds', tag))
        return ops

    def put(self, ops):
        for x in ops:
            if callable(x): x()
            elif isinstance(x, tuple): self.e(x[0], x[1])
            else: self.e(x)

    @staticmethod
    def mix(*lists):
        items = []
        for k, l in enumerate(lists):
            for i, x in enumerate(l):
                items.append(((i + 0.5) / len(l), k, i, x))
        items.sort(key=lambda z: z[:3])
        return [z[3] for z in items]

    def p1_addr_dma(self):
        t = vT
        if self.mapb:
            self.e(f'''
            s_lshl_b32 s{sMT}, s{sXCD}, 1
            s_and_b32 s{sT0}, s{sJ}, 1
            s_add_u32 s{sMT}, s{sMT}, s{sT0}
            s_lshr_b32 s{sT1}, s{sJ}, 1
            s_mov_b32 s{sFT}, s{sT1}
            ''')
        else:
            self.e(f'''
            s_lshr_b32 s{sMT}, s{sXCD}, 1
            s_lshl_b32 s{sMT}, s{sMT}, 2
            s_and_b32 s{sT0}, s{sJ}, 3
            s_add_u32 s{sMT}, s{sMT}, s{sT0}
            s_and_b32 s{sFT}, s{sXCD}, 1
            s_mul_i32 s{sFT}, s{sFT}, 7
            s_lshr_b32 s{sT1}, s{sJ}, 2
            s_add_u32 s{sFT}, s{sFT}, s{sT1}
            ''')
        self.e(f'''
        s_mul_i32 s{sT0}, s{sT0}, {self.rot1[0]}
        s_mul_i32 s{sT1}, s{sT1}, {self.rot1[1]}
        s_mul_i32 s{sT2}, s{sXCD}, {self.rot1[2]}
        s_add_u32 s{sT0}, s{sT0}, s{sT1}
        s_add_u32 s{sT0}, s{sT0}, s{sT2}
        s_lshr_b32 s{sT0}, s{sT0}, 2
        s_mul_i32 s{sT1}, s{sT0}, 205
        s_lshr_b32 s{sT1}, s{sT1}, 11
        s_mul_i32 s{sT1}, s{sT1}, 10
        s_sub_u32 s{sT0}, s{sT0}, s{sT1}
        s_lshl_b32 s{sKX}, s{sT0}, 7
        s_mul_i32 s{sKW}, s{sT0}, {64*3456}
        s_lshl_b32 s{sT0}, s{sMT}, 2
        s_add_u32 s{sT0}, s{sT0}, s{sW}
        s_mul_i32 s{sT0}, s{sT0}, {32*1280}
        s_mul_i32 s{sT1}, s{sW}, {16*3456}
        s_lshl_b32 s{sT2}, s{sFT}, 8
        s_add_u32 s{sT1}, s{sT1}, s{sT2}
        s_sub_u32 s{sT2}, 3456, s{sT2}
        v_lshrrev_b32 {V(t)}, 3, {V(vLANE)}
        v_and_b32 {V(t+1)}, 7, {V(vLANE)}
        v_lshrrev_b32 {V(t+2)}, 1, {V(t)}
        v_xor_b32 {V(t+1)}, {V(t+1)}, {V(t+2)}
        v_lshlrev_b32 {V(t+1)}, 4, {V(t+1)}
        v_mul_u32_u24 {V(t)}, 1280, {V(t)}
        v_add_u32 {V(t)}, s{sT0}, {V(t)}
        v_add_u32 {V(vOX)}, {V(t)}, {V(t+1)}
        v_xor_b32 {V(t+1)}, 64, {V(t+1)}
        v_add_u32 {V(vOX+1)}, {V(t)}, {V(t+1)}
        v_add_u32 {V(vOX+1)}, {8*1280-1024}, {V(vOX+1)}
        v_add_u32 {V(vOX+2)}, {16*1280-2048}, {V(vOX)}
        v_add_u32 {V(vOX+3)}, {16*1280-2048}, {V(vOX+1)}
        v_lshrrev_b32 {V(t)}, 4, {V(vLANE)}
        v_and_b32 {V(t+1)}, 15, {V(vLANE)}
        v_lshlrev_b32 {V(t+2)}, 1, {V(t)}
        v_xor_b32 {V(t+1)}, {V(t+1)}, {V(t+2)}
        v_lshlrev_b32 {V(t+1)}, 4, {V(t+1)}
        v_xor_b32 {V(t+3)}, 0x80, {V(t+1)}
        v_mul_u32_u24 {V(t)}, 3456, {V(t)}
        v_mov_b32 {V(t+2)}, {OOB}
        v_add3_u32 {V(vOW)}, {V(t)}, {V(t+1)}, s{sT1}
        v_cmp_gt_u32 vcc, s{sT2}, {V(t+1)}
        v_add3_u32 {V(vOW+2)}, {V(t)}, {V(t+3)}, s{sT1}
        v_cndmask_b32 {V(vOW)}, {V(t+2)}, {V(vOW)}, vcc
        v_cmp_gt_u32 vcc, s{sT2}, {V(t+3)}
        v_add_u32 {V(vOW+1)}, 12800, {V(vOW)}
        v_cndmask_b32 {V(vOW+2)}, {V(t+2)}, {V(vOW+2)}, vcc
        v_add_u32 {V(vOW+3)}, {3*12800}, {V(vOW+2)}
        v_add_u32 {V(vOW+2)}, {2*12800}, {V(vOW+2)}
        s_lshr_b32 s{sT2}, s{sW}, 1
        s_lshl_b32 s{sT2}, s{sT2}, 7
        s_lshl_b32 s{sT3}, s{sFT}, 8
        s_add_u32 s{sT3}, s{sT2}, s{sT3}
        v_lshrrev_b32 {V(t)}, 4, {V(vLANE)}
        v_lshlrev_b32 {V(t)}, 3, {V(t)}
        v_add_u32 {V(vOB1)}, s{sT3}, {V(t)}
        ''')

    def p1_stage_dma(self, s):
        sl = (s % 5) * 32768
        ops = self.dma(vOX, SX, sKX, sl, ('st', s)) + self.dma(vOW, SW1, sKW, sl + 16384, ('st', s))
        if s < 9:
            ops += [f's_add_u32 s{sKX}, s{sKX}, 128', f's_add_u32 s{sKW}, s{sKW}, {64*3456}',
                    lambda: self.e(f's_cmp_eq_u32 s{sKX}, 1280\ns_cselect_b32 s{sKX}, 0, s{sKX}\ns_cselect_b32 s{sKW}, 0, s{sKW}')]
        return ops

    def p1_addr_rest(self):
        e = self.e; t = vT
        e(f'''
        s_and_b32 s{sT0}, s{sW}, 1
        s_lshr_b32 s{sT1}, s{sW}, 1
        s_lshl_b32 s{sT2}, s{sT0}, 13
        v_and_b32 {V(t)}, 15, {V(vLANE)}
        v_lshrrev_b32 {V(t+1)}, 4, {V(vLANE)}
        v_bfe_u32 {V(t+2)}, {V(vLANE)}, 1, 3
        v_lshlrev_b32 {V(t)}, 7, {V(t)}
        v_xor_b32 {V(t+2)}, {V(t+1)}, {V(t+2)}
        v_lshl_add_u32 {V(t)}, {V(t+2)}, 4, {V(t)}
        v_add_u32 {V(vLX)}, s{sT2}, {V(t)}
        v_xor_b32 {V(vLX+1)}, 64, {V(vLX)}
        v_bfe_u32 {V(t)}, {V(vLANE)}, 2, 2
        v_lshl_add_u32 {V(t+2)}, {V(t+1)}, 3, {V(t)}
        v_lshlrev_b32 {V(t+2)}, 8, {V(t+2)}
        v_and_b32 {V(t+3)}, 3, {V(vLANE)}
        v_lshl_add_u32 {V(t+2)}, {V(t+3)}, 3, {V(t+2)}
        v_add_u32 {V(t+2)}, 16384, {V(t+2)}
        v_and_b32 {V(t+3)}, 1, {V(t+1)}
        v_lshl_add_u32 {V(t)}, {V(t+3)}, 2, {V(t)}
        s_lshl_b32 s{sT2}, s{sT1}, 2
        ''')
        for fb in range(4):
            e(f'''
            s_add_u32 s{sT3}, s{sT2}, {fb}
            v_xor_b32 {V(t+3)}, s{sT3}, {V(t)}
            v_lshl_add_u32 {V(vLW+fb)}, {V(t+3)}, 5, {V(t+2)}
            ''')
        for st in (1, 2):
            for k in range(2): e(f'v_add_u32 {V(vLX+2*st+k)}, {65536*st}, {V(vLX+k)}')
            for k in range(4): e(f'v_add_u32 {V(vLW+4*st+k)}, {65536*st}, {V(vLW+k)}')
        e(f'''
        s_lshl_b32 s{sT2}, s{sMT}, 3
        s_lshl_b32 s{sT3}, s{sT0}, 2
        s_add_u32 s{sT2}, s{sT2}, s{sT3}
        s_mul_i32 s{sT2}, s{sT2}, 54
        s_lshl_b32 s{sT3}, s{sFT}, 2
        s_add_u32 s{sT2}, s{sT2}, s{sT3}
        s_lshl_b32 s{sT3}, s{sT1}, 1
        s_add_u32 s{sT2}, s{sT2}, s{sT3}
        s_lshl_b32 s{sT2}, s{sT2}, 10
        s_lshl_b32 s{sT3}, s{sFT}, 1
        s_add_u32 s{sT3}, s{sT3}, s{sT1}
        s_cmp_ge_u32 s{sT3}, 27
        s_cselect_b32 s{sT2}, {OOB}, s{sT2}
        v_lshlrev_b32 {V(t)}, 4, {V(vLANE)}
        v_add_u32 {V(vOH)}, s{sT2}, {V(t)}
        s_mov_b32 s{sMB1}, {55296}
        s_mov_b32 s{sMB2}, {2*55296}
        s_mov_b32 s{sMB3}, {3*55296}
        v_mov_b32 {V(vC0)}, {f32(C0)}
        v_mov_b32 {V(vC0+1)}, {f32(C0)}
        v_mov_b32 {V(vC1)}, {f32(C1)}
        v_mov_b32 {V(vC1+1)}, {f32(C1)}
        v_mov_b32 {V(vONE)}, 1.0
        v_mov_b32 {V(vONE+1)}, 1.0
        ''')

    def p1_reads(self, t):
        s, ks = divmod(t, 2)
        sl = s % 5; st = sl // 2; off = (sl % 2) * 32768
        fa = vF + 32 * (t & 1); fbb = fa + 16
        r = []
        def ra(fb):
            for jh in range(2):
                r.append(f'ds_read_b64_tr_b16 {V(fa+4*fb+2*jh, 2)}, {V(vLW+4*st+fb)} offset:{off + (32*ks+4*jh)*256}')
        ra(0)
        for mb in range(4):
            r.append(f'ds_read_b128 {V(fbb+4*mb, 4)}, {V(vLX+2*st+ks)} offset:{off + 2048*mb}')
        ra(1); ra(2); ra(3)
        return r

    def p1_mfmas(self, t):
        fa = vF + 32 * (t & 1); fbb = fa + 16
        r = []
        for fb in range(4):
            for mb in range(4):
                acc = vACC + 16 * fb + 4 * mb
                c = V(vBIAS + 4 * fb, 4) if t == 0 else V(acc, 4)
                r.append(f'v_mfma_f32_16x16x32_bf16 {V(acc,4)}, {V(fa+4*fb,4)}, {V(fbb+4*mb,4)}, {c}')
        return r

    def gelu8(self, x0, x1, pk):
        g = vG; r = []
        P = lambda n: V(n, 2)
        xs = [x0, x0 + 2, x1, x1 + 2]
        for j in range(4): r.append(f'v_pk_mul_f32 {P(g+2*j)}, {P(xs[j])}, {P(xs[j])}')
        for j in range(4): r.append(f'v_pk_fma_f32 {P(g+2*j)}, {P(g+2*j)}, {P(vC1)}, {P(vC0)}')
        for j in range(4): r.append(f'v_pk_mul_f32 {P(g+2*j)}, {P(xs[j])}, {P(g+2*j)}')
        for j in range(8): r.append(f'v_exp_f32 {V(g+j)}, {V(g+j)}')
        for j in range(4): r.append(f'v_pk_add_f32 {P(g+2*j)}, {P(g+2*j)}, {P(vONE)}')
        for j in range(8): r.append(f'v_rcp_f32 {V(g+j)}, {V(g+j)}')
        for j in range(4): r.append(f'v_pk_mul_f32 {P(g+2*j)}, {P(xs[j])}, {P(g+2*j)}')
        for j in range(4): r.append(f'v_cvt_pk_bf16_f32 {V(pk+j)}, {V(g+2*j)}, {V(g+2*j+1)}')
        return r

    def at(self, where):
        return [op for u in range(14) if self.plan[u] == where for op in self.w2_dma(u)]

    def phase1(self):
        e = self.e
        self.p1_addr_dma()
        e.force('s_waitcnt lgkmcnt(0)')
        self.stamp()
        for fb in range(4):
            e(f'buffer_load_dwordx2 {V(vRAW+2*fb,2)}, {V(vOB1)}, {S(SB1)}, 0 offen offset:{32*fb}')
        self.put(self.p1_stage_dma(0))
        if '0' in self.fine: self.stamp()
        self.p1_addr_rest()
        self.p2_addr()
        if '0' in self.fine: self.stamp()
        for s in range(1, self.pre1):
            self.put(self.p1_stage_dma(s))
        for i in range(8):
            e(f'v_lshlrev_b32 {V(vBIAS+2*i)}, 16, {V(vRAW+i)}')
            e(f'v_and_b32 {V(vBIAS+2*i+1)}, 0xffff0000, {V(vRAW+i)}')
        if '0' in self.fine:
            self.stamp(); e.wait_tag(('st', 0)); self.stamp()
        e.wait_tag(('st', 0))
        e('s_barrier')
        self.stamp()
        late = [self.b2_load]
        nl = (len(late) + 9) // 10
        self.put(self.p1_reads(0))
        for s in range(10):
            dm = (self.p1_stage_dma(s + self.pre1) if s + self.pre1 < 10 else []) + self.at(s)
            q = (len(dm) + 1) // 2
            for ks in range(2):
                t = 2 * s + ks
                mf = self.p1_mfmas(t)
                if ks == 1 and s < 9:
                    e.wait_all(vm=False)
                    e.wait_tag(('st', s + 1))
                    e('s_barrier')
                rd = self.p1_reads(t + 1) if t < 19 else []
                part = dm[q * ks: q * ks + q]
                misc = late[nl * (t - 1): nl * t] if t >= 1 else []
                interleave(e, mf[:14], self.mix(*[l for l in (rd, part, misc) if l]))
                self.put(mf[14:])
            if '1' in self.fine and s < 9: self.stamp()
        self.stamp()
        e(f'v_mov_b32 {V(vT)}, 0')
        e(f'buffer_load_dword {V(vDBG)}, {V(vT)}, {S(SDBG)}, 0 offen sc1')
        n = 0
        for P in range(2):
            dm = self.at('g0' if P == 0 else 'g1')
            ro = self.readout(self.ro['g0' if P == 0 else 'g1'])
            extra = self.mix(*[l for l in (ro, dm) if l])
            q = (len(extra) + 3) // 4
            for mb in range(4):
                pk = vPK + 4 * (n % 4)
                body = self.gelu8(vACC + 32 * P + 4 * mb, vACC + 32 * P + 16 + 4 * mb, pk)
                interleave(e, body, extra[q * mb: q * mb + q])
                so = '0' if mb == 0 else f's{sMB1 + mb - 1}'
                e(f'buffer_store_dwordx4 {V(pk,4)}, {V(vOH)}, {S(SH)}, {so} offen offset:{P*1024} {self.hflags}', 'hst')
                n += 1
        self.stamp()

    def p2_addr_ops(self):
        lines = []
        real = self.e
        self.e = lambda txt, tag=None: lines.extend(l.strip() for l in txt.strip('\n').split('\n') if l.strip())
        self.p2_addr()
        self.e = real
        ops = []
        i = 0
        while i < len(lines):
            j = i + 1
            if lines[i].startswith('s_cmp'):
                last = i
                for k in range(i + 1, min(len(lines), i + 4)):
                    if lines[k].startswith('s_cselect'): last = k
                    elif not lines[k].startswith('s_mov'): break
                j = last + 1
            ops.append('\n'.join(lines[i:j])); i = j
        return ops

    def p2_addr(self):
        e = self.e; t = vT
        if self.mapb:
            e(f'''
            s_mul_i32 s{sRT}, s{sJ}, 205
            s_lshr_b32 s{sRT}, s{sRT}, 11
            s_mul_i32 s{sT0}, s{sRT}, 10
            s_sub_u32 s{sCT}, s{sJ}, s{sT0}
            s_mul_i32 s{sT0}, s{sRT}, 5
            s_lshl_b32 s{sMB0}, s{sXCD}, 4
            s_add_u32 s{sMB0}, s{sMB0}, s{sT0}
            s_cmp_ge_u32 s{sJ}, 30
            s_cselect_b32 s{sT}, 125, 0
            s_cmp_ge_u32 s{sRT}, 2
            s_cselect_b32 s{sNB}, 6, 5
            s_mov_b32 s{sSTEP5}, {OOB}
            s_cselect_b32 s{sSTEP5}, 55296, s{sSTEP5}
            s_mov_b32 s{sT1}, s{sXCD}
            ''')
        else:
            e(f'''
            s_lshr_b32 s{sT1}, s{sXCD}, 1
            s_mul_i32 s{sT}, s{sT1}, 28
            s_add_u32 s{sT}, s{sT}, s{sJ}
            s_cmp_ge_u32 s{sT}, 110
            s_cselect_b32 s{sT}, 125, s{sT}
            s_lshl_b32 s{sT1}, s{sT1}, 2
            s_add_u32 s{sT1}, s{sT1}, s{sJ}
            s_add_u32 s{sT1}, s{sT1}, {110 - 28}
            s_cmp_ge_u32 s{sJ}, 28
            s_cselect_b32 s{sT}, s{sT1}, s{sT}
            s_mul_i32 s{sRT}, s{sT}, 205
            s_lshr_b32 s{sRT}, s{sRT}, 10
            s_mul_i32 s{sT0}, s{sRT}, 5
            s_sub_u32 s{sT1}, s{sT}, s{sT0}
            s_and_b32 s{sCT}, s{sXCD}, 1
            s_mul_i32 s{sCT}, s{sCT}, 5
            s_add_u32 s{sCT}, s{sCT}, s{sT1}
            s_max_u32 s{sT2}, s{sRT}, 22
            s_sub_u32 s{sT2}, s{sT2}, 22
            s_add_u32 s{sMB0}, s{sT0}, s{sT2}
            s_cmp_ge_u32 s{sRT}, 22
            s_cselect_b32 s{sNB}, 6, 5
            s_mov_b32 s{sSTEP5}, {OOB}
            s_cselect_b32 s{sSTEP5}, 55296, s{sSTEP5}
            ''')
        e(f'''
        s_mul_i32 s{sT1}, s{sT1}, {self.rot2[0]}
        s_mul_i32 s{sT0}, s{sRT}, {self.rot2[1]}
        s_add_u32 s{sT0}, s{sT0}, s{sT1}
        s_lshr_b32 s{sT0}, s{sT0}, 2
        s_mul_i32 s{sT1}, s{sT0}, 1261
        s_lshr_b32 s{sT1}, s{sT1}, 14
        s_mul_i32 s{sT1}, s{sT1}, 13
        s_sub_u32 s{sT0}, s{sT0}, s{sT1}
        s_mul_i32 s{sU}, s{sT0}, 163840
        s_lshl_b32 s{sHS}, s{sT0}, 12
        ''')
        for u in range(1, 13):
            e(f'''
            s_add_u32 s{sHS+u}, s{sHS+u-1}, 4096
            s_cmp_eq_u32 s{sHS+u}, {13*4096}
            s_cselect_b32 s{sHS+u}, 0, s{sHS+u}
            ''')
        e(f'''
        s_mov_b32 s{sHS+13}, {13*4096}
        s_and_b32 s{sT0}, s{sW}, 2
        s_mul_i32 s{sT0}, s{sT0}, {32*1280}
        s_sub_u32 s{sU13}, {13*163840}, s{sT0}
        s_mul_i32 s{sT0}, s{sW}, {32*1280}
        s_lshl_b32 s{sT1}, s{sCT}, 7
        s_add_u32 s{sT0}, s{sT0}, s{sT1}
        v_lshrrev_b32 {V(t)}, 3, {V(vLANE)}
        v_and_b32 {V(t+1)}, 7, {V(vLANE)}
        v_and_b32 {V(t+2)}, 6, {V(t)}
        v_xor_b32 {V(t+1)}, {V(t+1)}, {V(t+2)}
        v_lshlrev_b32 {V(t+1)}, 4, {V(t+1)}
        v_mul_u32_u24 {V(t+2)}, 1280, {V(t)}
        v_add3_u32 {V(vOW2)}, {V(t+2)}, {V(t+1)}, s{sT0}
        v_add_u32 {V(vOW2+1)}, 9216, {V(vOW2)}
        v_add_u32 {V(vOW2+2)}, {2*9216}, {V(vOW2)}
        v_add_u32 {V(vOW2+3)}, {3*9216}, {V(vOW2)}
        v_and_b32 {V(t)}, 3, {V(t)}
        v_lshrrev_b32 {V(t+1)}, 2, {V(vLANE)}
        v_lshlrev_b32 {V(t+1)}, 7, {V(t+1)}
        v_and_b32 {V(t+2)}, 3, {V(vLANE)}
        v_lshl_add_u32 {V(t+1)}, {V(t+2)}, 3, {V(t+1)}
        v_add_u32 {V(t+1)}, s{sW4K}, {V(t+1)}
        ''')
        for d in range(4):
            e(f'''
            v_xor_b32 {V(t+3)}, {d}, {V(t)}
            v_lshl_add_u32 {V(vLW2+d)}, {V(t+3)}, 5, {V(t+1)}
            ''')
        for st in (1, 2):
            for d in range(4): e(f'v_add_u32 {V(vLW2+4*st+d)}, {65536*st}, {V(vLW2+d)}')
        e(f'''
        s_mul_i32 s{sT0}, s{sMB0}, 54
        s_add_u32 s{sT0}, s{sT0}, s{sW}
        s_lshl_b32 s{sT0}, s{sT0}, 10
        s_cmp_lt_u32 s{sW}, 2
        s_cselect_b32 s{sT1}, s{sT0}, {OOB}
        v_lshlrev_b32 {V(t)}, 4, {V(vLANE)}
        v_add_u32 {V(vOHL)}, s{sT0}, {V(t)}
        v_add_u32 {V(vOH13)}, s{sT1}, {V(t)}
        v_and_b32 {V(t)}, 15, {V(vLANE)}
        v_lshrrev_b32 {V(t+1)}, 4, {V(vLANE)}
        s_lshl_b32 s{sT0}, s{sCT}, 7
        v_lshl_add_u32 {V(vOB2)}, {V(t)}, 3, s{sT0}
        s_lshl_b32 s{sT1}, s{sMB0}, 2
        s_add_u32 s{sT1}, s{sT1}, s{sW}
        s_mul_i32 s{sT1}, s{sT1}, {4*1280}
        v_mul_u32_u24 {V(t+2)}, 1280, {V(t+1)}
        v_add3_u32 {V(vOO)}, {V(t+2)}, {V(vOB2)}, s{sT1}
        s_add_u32 s{sT0}, s{sW4K}, 65536
        v_and_b32 {V(t+2)}, 7, {V(t)}
        v_xor_b32 {V(t+2)}, {V(t+2)}, {V(t+1)}
        v_lshlrev_b32 {V(t+2)}, 4, {V(t+2)}
        v_lshl_add_u32 {V(t+2)}, {V(t)}, 8, {V(t+2)}
        v_add_u32 {V(vEXW)}, s{sT0}, {V(t+2)}
        v_xor_b32 {V(vEXW+1)}, 64, {V(vEXW)}
        s_lshl_b32 s{sT0}, s{sW}, 2
        v_add_u32 {V(t+2)}, s{sT0}, {V(t+1)}
        v_and_b32 {V(t+3)}, 7, {V(t+2)}
        v_xor_b32 {V(t+3)}, {V(t+3)}, {V(t)}
        v_lshlrev_b32 {V(t+3)}, 4, {V(t+3)}
        v_lshl_add_u32 {V(t+3)}, {V(t+2)}, 8, {V(t+3)}
        v_add_u32 {V(vEXR)}, 65536, {V(t+3)}
        s_lshr_b32 s{sT2}, s{sMB0}, 3
        s_add_u32 s{sT3}, s{sMB0}, s{sNB}
        s_sub_u32 s{sT3}, s{sT3}, 1
        s_lshr_b32 s{sT3}, s{sT3}, 3
        s_sub_u32 s{sT3}, s{sT3}, s{sT2}
        s_lshl_b32 s{sT2}, s{sT2}, {self.fsh + 4}
        s_lshl_b32 s{sT3}, s{sT3}, {self.fsh + 4}
        v_min_u32 {V(t)}, 13, {V(t)}
        v_lshlrev_b32 {V(t)}, {self.fsh}, {V(t)}
        v_and_b32 {V(t+1)}, 1, {V(t+1)}
        v_mul_u32_u24 {V(t+1)}, s{sT3}, {V(t+1)}
        v_add3_u32 {V(vFL)}, {V(t)}, {V(t+1)}, s{sT2}
        ''')

    @staticmethod
    def slot(u):
        return u if u < 8 else (u - 8 if u < 12 else u - 4)

    def w2_dma(self, u):
        so = sU13 if u == 13 else sU
        ops = []
        if 8 <= u < 12:
            ops.append(lambda: self.slot_free(u - 8))
        ops += self.dma(vOW2, SW2, so, self.slot(u) * 16384, ('u', u))
        if u < 12:
            ops += [f's_add_u32 s{sU}, s{sU}, 163840', lambda: self.e(f's_cmp_eq_u32 s{sU}, {13*163840}\ns_cselect_b32 s{sU}, 0, s{sU}')]
        return ops

    def slot_free(self, u):
        assert u in self.readout_done
        regs = {('a', 16 * u + i) for i in range(16)}
        idx = [i for i, d in enumerate(self.e.lq) if d & regs]
        if idx: self.e._wait(lg=len(self.e.lq) - 1 - idx[-1])

    def readout(self, units):
        r = []
        for u in units:
            z = self.slot(u); st = z // 4; off = (z % 4) * 16384
            r.append(lambda u=u: self.e.wait_tag(('u', u)))
            r += [f'ds_read_b64_tr_b16 {A(16*u+4*d+2*jh, 2)}, {V(vLW2+4*st+d)} offset:{off + 2048*jh}' for d in range(4) for jh in range(2)]
            r.append(lambda u=u: self.readout_done.add(u))
        return r

    def h_load(self, n):
        b, u = divmod(n, 14)
        ops = []
        if u == 0 and b > 0:
            inc = f's{sSTEP5}' if b == 5 else '55296'
            ops += [f'v_add_u32 {V(vOHL)}, {inc}, {V(vOHL)}', f'v_add_u32 {V(vOH13)}, {inc}, {V(vOH13)}']
        ops.append(f'buffer_load_dwordx4 {V(vH+4*u,4)}, {V(vOH13 if u == 13 else vOHL)}, {S(SH)}, s{sHS+u} offen {self.hflags}')
        return ops

    def b2_load(self):
        self.e(f'buffer_load_dwordx2 {V(vRAW2,2)}, {V(vOB2)}, {S(SB2)}, 0 offen')

    def b2_unpack(self):
        for i in range(2):
            self.e(f'v_lshlrev_b32 {V(vB2+2*i)}, 16, {V(vRAW2+i)}')
            self.e(f'v_and_b32 {V(vB2+2*i+1)}, 0xffff0000, {V(vRAW2+i)}')

    def fin_write(self, b):
        acc = vACC2 + 16 * (b & 1)
        return [f'ds_write_b128 {V(vEXW+(d&1))}, {V(acc+4*d,4)} offset:{16384*(b&1) + 128*(d>>1)}' for d in range(4)]

    def fin_bar(self):
        return [lambda: (self.e.wait_all(vm=False), self.e('s_barrier'))]

    def fin_read(self, b):
        return [f'ds_read_b128 {V(vRX+4*p,4)}, {V(vEXR)} offset:{16384*(b&1) + 4096*p}' for p in range(4)]

    def fin_out(self, b):
        r = []
        for j in range(4): r.append(f'v_add_f32 {V(vRX+j)}, {V(vRX+j)}, {V(vRX+4+j)}')
        for j in range(4): r.append(f'v_add_f32 {V(vRX+8+j)}, {V(vRX+8+j)}, {V(vRX+12+j)}')
        for j in range(4): r.append(f'v_add_f32 {V(vRX+j)}, {V(vRX+j)}, {V(vB2+j)}')
        for j in range(4): r.append(f'v_add_f32 {V(vRX+j)}, {V(vRX+j)}, {V(vRX+8+j)}')
        pk = vPK2 + 2 * (b & 1)
        for j in range(2): r.append(f'v_cvt_pk_bf16_f32 {V(pk+j)}, {V(vRX+2*j)}, {V(vRX+2*j+1)}')
        r.append(f'buffer_store_dwordx2 {V(pk,2)}, {V(vOO)}, {S(SOUT)}, 0 offen {self.oflags}')
        r.append(f'v_add_u32 {V(vOO)}, {16*1280}, {V(vOO)}')
        return r

    def block(self, b, last):
        e = self.e
        for u in range(14):
            n = 14 * b + u
            fill = []
            for _ in range(2):
                if self.issued < min(last, n + 1 + self.la):
                    fill += self.h_load(self.issued); self.issued += 1
            if b == 0:
                for k, uu in enumerate(self.ro['b0']):
                    if u == uu - 7: fill += self.readout([uu])
            if b > 0:
                if 1 <= u <= 4: fill += self.fin_write(b - 1)[u - 1: u]
                if u == 6: fill += self.fin_bar() + self.fin_read(b - 1)[:2]
                if u == 7: fill += self.fin_read(b - 1)[2:]
                if u >= 9: fill += self.fin_out(b - 1)[4 * (u - 9): 4 * (u - 8)]
            acc = vACC2 + 16 * (b & 1)
            mf = [f'v_mfma_f32_16x16x32_bf16 {V(acc+4*d,4)}, {A(16*u+4*d,4)}, {V(vH+4*u,4)}, {V(acc+4*d,4) if u else 0}' for d in range(4)]
            interleave(e, mf, fill)

    def tail(self, b):
        self.stamp()
        self.put(self.fin_write(b) + self.fin_bar() + self.fin_read(b) + self.fin_out(b)[:-1])
        if self.stamps: self.e.wait_all()
        self.stamp()

    def phase2(self):
        e = self.e
        for n in range(self.hpre): self.put(self.h_load(n))
        self.issued = self.hpre
        for b in range(5):
            self.block(b, 84)
            if '2' in self.fine and b < 4: self.stamp()
        e(f's_cmp_eq_u32 s{sNB}, 6')
        e('s_cbranch_scc1 L_six')
        saved = (list(e.vq), list(e.lq), list(e.hist), self.nst)
        self.tail(4)
        e('s_branch L_fin')
        e.label('L_six')
        e.vq, e.lq, e.hist, self.nst = saved
        self.block(5, 84)
        self.tail(5)

    def spin(self, label, load, check):
        e = self.e
        e(f's_mov_b32 s{sSPIN}, 0')
        e.label(label)
        e(load)
        e.force('s_waitcnt vmcnt(0)')
        e(check)
        e(f's_cbranch_vccz {label}_ok')
        if self.psleep: e(f's_sleep {self.psleep}')
        e(f's_add_u32 s{sSPIN}, s{sSPIN}, 1')
        e(f's_cmp_lt_u32 s{sSPIN}, 200000')
        e(f's_cbranch_scc1 {label}')
        e.label(label + '_ok')

    def flg_srd(self):
        self.e(f'''
        s_add_u32 s{SFLG}, s{SH}, {FLG_OFF}
        s_addc_u32 s{SFLG+1}, s{SH+1}, 0
        s_mov_b32 s{SFLG+2}, {256 << self.fsh}
        s_mov_b32 s{SFLG+3}, 0x20000
        ''')

    def touch_w2(self):
        e = self.e; t = vT
        if self.mapb:
            e(f'''
            s_sub_u32 s{sT0}, s{sJ}, 28
            s_lshl_b32 s{sT0}, s{sT0}, 2
            s_add_u32 s{sT0}, s{sT0}, s{sW}
            s_mul_i32 s{sT0}, s{sT0}, {1080*128}
            s_mul_i32 s{sT1}, s{sXCD}, 135
            v_add_u32 {V(t)}, s{sT1}, {V(vLANE)}
            ''')
            for n in range(17):
                e(f'''
                v_subrev_u32 {V(t+1)}, 1080, {V(t)}
                v_min_u32 {V(t+1)}, {V(t+1)}, {V(t)}
                v_lshlrev_b32 {V(t+1)}, 7, {V(t+1)}
                buffer_load_dword {V(vF+n)}, {V(t+1)}, {S(SW2)}, s{sT0} offen
                v_add_u32 {V(t)}, 64, {V(t)}
                ''')
            return
        e(f'''
        s_sub_u32 s{sT0}, s{sJ}, 28
        s_lshl_b32 s{sT0}, s{sT0}, 2
        s_add_u32 s{sT0}, s{sT0}, s{sW}
        s_mul_i32 s{sT0}, s{sT0}, 540
        s_lshr_b32 s{sT1}, s{sXCD}, 1
        s_mul_i32 s{sT1}, s{sT1}, 135
        s_and_b32 s{sT2}, s{sXCD}, 1
        s_mul_i32 s{sT2}, s{sT2}, 640
        v_add_u32 {V(t)}, s{sT1}, {V(vLANE)}
        ''')
        for n in range(9):
            e(f'''
            v_subrev_u32 {V(t+1)}, 540, {V(t)}
            v_min_u32 {V(t+1)}, {V(t+1)}, {V(t)}
            v_add_u32 {V(t+1)}, s{sT0}, {V(t+1)}
            v_mul_u32_u24 {V(t+2)}, 52429, {V(t+1)}
            v_lshrrev_b32 {V(t+2)}, 18, {V(t+2)}
            v_mul_u32_u24 {V(t+2)}, 640, {V(t+2)}
            v_lshl_add_u32 {V(t+1)}, {V(t+1)}, 7, {V(t+2)}
            buffer_load_dword {V(vF+n)}, {V(t+1)}, {S(SW2)}, s{sT2} offen
            v_add_u32 {V(t)}, 64, {V(t)}
            ''')

    def build(self):
        e = self.e
        self.entry()
        e(f's_cmp_ge_u32 s{sJ}, 28')
        e('s_cbranch_scc1 L_idle1')
        self.phase1()
        self.put(self.mix(*[l for l in (self.at('post'), self.readout(self.ro['post'])) if l]))
        self.flg_srd()
        self.b2_unpack()
        if self.htouch:
            e(f'''
            v_lshrrev_b32 {V(vT)}, 4, {V(vLANE)}
            v_mul_u32_u24 {V(vT)}, 55296, {V(vT)}
            v_and_b32 {V(vT+1)}, 15, {V(vLANE)}
            v_lshl_add_u32 {V(vT)}, {V(vT+1)}, 7, {V(vT)}
            v_lshlrev_b32 {V(vT+1)}, 4, {V(vLANE)}
            v_sub_u32 {V(vT+1)}, {V(vOH)}, {V(vT+1)}
            v_add_u32 {V(vT+2)}, {V(vT)}, {V(vT+1)}
            ''')
        e.wait_tag('hst')
        e('s_barrier')
        self.stamp()
        vq = list(e.vq)
        e(f'v_cmp_eq_u32 vcc, 0, {V(vDBG)}')
        e('s_cbranch_vccz L_dbg_ok')
        e(f'v_mov_b32 {V(vT)}, 0')
        self.spin('L_dbg', f'buffer_load_dword {V(vDBG)}, {V(vT)}, {S(SDBG)}, 0 offen sc1', f'v_cmp_eq_u32 vcc, 0, {V(vDBG)}')
        e.vq = vq
        e(f'''
        s_lshl_b32 s{sT0}, s{sMT}, {self.fsh + 4}
        s_lshl_b32 s{sT1}, s{sFT}, {self.fsh}
        s_add_u32 s{sT0}, s{sT0}, s{sT1}
        s_cmp_eq_u32 s{sW}, 0
        s_cselect_b32 s{sT0}, s{sT0}, {OOB}
        v_mov_b32 {V(vT)}, s{sT0}
        v_mov_b32 {V(vT+1)}, 1
        s_mov_b64 s[{sEX}:{sEX+1}], exec
        s_mov_b64 exec, 1
        buffer_store_dword {V(vT+1)}, {V(vT)}, {S(SFLG)}, 0 offen sc1
        s_mov_b64 exec, s[{sEX}:{sEX+1}]
        s_cmp_ge_u32 s{sT}, 125
        s_cbranch_scc1 L_fin
        ''')
        if '3' in self.fine: self.stamp()
        self.put(self.mix(*[l for l in (self.at('late'), self.readout(self.ro['late'])) if l]))
        if self.htouch:
            e(f'''
            s_cmp_eq_u32 s{sW}, 0
            s_cselect_b32 s{sT0}, {OOB}, 0
            v_add_u32 {V(vT+4)}, s{sT0}, {V(vT+2)}
            s_cmp_eq_u32 s{sW}, 1
            s_cselect_b32 s{sT0}, {-4*55296 & 0xffffffff}, {OOB}
            v_add_u32 {V(vT+5)}, s{sT0}, {V(vT+2)}
            buffer_load_dword {V(vT+3)}, {V(vT+4)}, {S(SH)}, 0 offen sc1
            buffer_load_dword {V(vT+3)}, {V(vT+5)}, {S(SH)}, 0 offen sc1
            ''')
        e.wait_all(vm=False)
        self.join_vq = list(e.vq)
        e('s_branch L_poll0')
        nst_join = self.nst
        e.label('L_idle1')
        e.vq = []; e.lq = []; e.hist = []; self.readout_done = set()
        e.force('s_waitcnt lgkmcnt(0)')
        self.flg_srd()
        e(f'''
        s_cmp_lg_u32 s2, 224
        s_cbranch_scc1 L_noclear
        s_cmp_lg_u32 s{sW}, 0
        s_cbranch_scc1 L_noclear
        v_lshlrev_b32 {V(vT)}, {self.fsh}, {V(vLANE)}
        v_mov_b32 {V(vT+2)}, 0
        ''')
        for i in range(4):
            e(f'buffer_store_dword {V(vT+2)}, {V(vT)}, {S(SFLG)}, 0 offen sc1')
            if i < 3: e(f'v_add_u32 {V(vT)}, {64 << self.fsh}, {V(vT)}')
        e.force('s_waitcnt vmcnt(0)')
        e(f'''
        v_mov_b32 {V(vT+6)}, 1
        s_mov_b64 s[{sEX}:{sEX+1}], exec
        s_mov_b64 exec, 1
        buffer_store_dword {V(vT+6)}, {V(vT+2)}, {S(SDBG)}, 0 offen sc1
        s_mov_b64 exec, s[{sEX}:{sEX+1}]
        ''')
        e.force('s_waitcnt vmcnt(0)')
        e.label('L_noclear')
        if self.touch: self.touch_w2()
        self.p2_addr()
        e(f's_cmp_ge_u32 s{sT}, 125')
        e('s_cbranch_scc1 L_fin')
        self.b2_load()
        for u in range(8): self.put(self.w2_dma(u))
        self.b2_unpack()
        self.put(self.readout(range(4)))
        for u in range(8, 14): self.put(self.w2_dma(u))
        self.put(self.readout([u for u in range(4, 14) if u not in self.ro['b0']]))
        e.wait_all()
        e(f'v_mov_b32 {V(vT)}, 0')
        self.spin('L_dbg2', f'buffer_load_dword {V(vDBG)}, {V(vT)}, {S(SDBG)}, 0 offen sc1', f'v_cmp_eq_u32 vcc, 0, {V(vDBG)}')
        e.label('L_poll0')
        self.nst = nst_join
        self.stamp()
        e(f's_cmp_lg_u32 s{sW}, 0')
        e('s_cbranch_scc1 L_poll_ok')
        self.spin('L_poll', f'buffer_load_dword {V(vDBG)}, {V(vFL)}, {S(SFLG)}, 0 offen sc1', f'v_cmp_ne_u32 vcc, 1, {V(vDBG)}')
        e('s_barrier')
        e.vq = self.join_vq
        self.stamp()
        self.phase2()
        e.label('L_fin')
        self.stamp_flush()
        e.label('L_end')
        e('s_endpgm')


HEAD = '''; out = gelu_tanh(x @ w1 + b1) @ w2 + b2, x (2048,640), w1 (640,1728), w2 (1728,640), all bf16.
; @launch grid=(256,1,1) block=(256,1,1) lds=163840
'''

def generate(stamps=False, **kw):
    g = Gen(stamps, **kw)
    k = NAME + '_kernel'
    g.e.raw(f'.globl {k}\n.p2align 8\n.type {k},@function\n{k}:')
    g.build()
    return HEAD + '.amdgcn_target "amdgcn-amd-amdhsa--gfx950"\n.text\n' + g.e.text() + f'''.section .rodata,"a"
.p2align 6
.amdhsa_kernel {k}
  .amdhsa_next_free_vgpr 512
  .amdhsa_next_free_sgpr 96
  .amdhsa_accum_offset 256
  .amdhsa_group_segment_fixed_size 0
  .amdhsa_kernarg_size 64
  .amdhsa_user_sgpr_count 2
  .amdhsa_user_sgpr_kernarg_segment_ptr 1
  .amdhsa_system_sgpr_workgroup_id_x 1
.end_amdhsa_kernel
'''

if __name__ == '__main__':
    out = sys.argv[1]; stamps = len(sys.argv) > 2 and sys.argv[2] == 'stamps'
    kw = eval(sys.argv[3]) if len(sys.argv) > 3 else {}
    open(out, 'w').write(generate(stamps, **kw))
```

```python
import sys, math, struct, copy
from emit import Emit, interleave

NAME = 'standalone__dense_activation_gelu__prompt'
M, D, F = 2048, 640, 1728
H_BYTES = 128 * 54 * 1024
FLG_OFF = 8 << 20
STAMP_OFF = 16 << 20
OOB = 0x40000000

def f32(x):
    return '0x%08x' % struct.unpack('<I', struct.pack('<f', x))[0]

C0 = -2.0 * math.sqrt(2.0 / math.pi) * math.log2(math.e)
C1 = C0 * 0.044715

sHS = 4
SX, SW1, SB1, SW2, SB2, SOUT, SDBG, SH, SFLG, SSTAMP = 20, 24, 28, 32, 36, 40, 44, 48, 52, 80
sW, sW4K, sMT, sFT, sKX, sKW, sT0, sT1, sT2, sT3 = 56, 57, 58, 59, 60, 61, 62, 63, 64, 65
sRT, sCT, sMB0, sNB, sU, sU13, sJ, sXCD, sSPIN, sT = 66, 67, 68, 69, 70, 71, 72, 73, 74, 75
sMB1, sMB2, sMB3, sNE = 76, 77, 78, 79
sEX, sST, sST2 = 84, 18, 86
sHB, sOB = 88, 94

def S(n): return f's[{n}:{n+3}]'
def V(n, k=1): return f'v{n}' if k == 1 else f'v[{n}:{n+k-1}]'
def A(n, k=1): return f'a{n}' if k == 1 else f'a[{n}:{n+k-1}]'

vLANE = 1
vT = 2
vOX, vOW, vOW2 = 10, 14, 18
vLX, vLW = 22, 28
vOH, vOB1 = 40, 41
vC0, vC1, vONE = 42, 44, 46
vG = 48
vB2 = 56
vRAW2 = 60
vACC = 64
vBIAS = 128
vRAW = 144
vF = 160
vPK = 128
vLW2 = 224
vOHL, vOH13, vOO, vOB2, vEXW, vEXR, vFL, vDBG, vSTO = 236, 237, 238, 239, 240, 242, 243, 244, 245
vHB, vH13B, vOOB, vFLL, vFST, vPOL = 246, 247, 248, 249, 250, 251
vACC2 = 64
vRX = 96
vPK2 = 112
vH = 160


class Gen:
    def __init__(self, stamps=False, hflags='sc1', rot1=(10, 6, 5), rot2=(10, 8), pre1=2, la=9, hpre=4,
                 plan=None, oflags='', touch=True, fine='', psleep=4, ro=None, fsh=7, fe=6, pl=10, pe=1, flf=False, map2='A', tlate=True, cpf=False, diag=None):
        self.stamps = stamps; self.e = Emit(); self.hflags = hflags; self.nst = 0
        self.rot1 = rot1; self.rot2 = rot2; self.pre1 = pre1; self.la = la; self.hpre = hpre; self.oflags = oflags
        self.touch = touch; self.mapb = False; self.fine = fine; self.psleep = psleep; self.fsh = fsh; self.fe = fe; self.pl = pl; self.pe = pe; self.flf = flf; self.map2 = map2; self.tlate = tlate; self.cpf = cpf; self.diag = diag
        self.plan = plan or dict([(0, 8), (1, 8), (2, 9), (3, 9)] + [(u, 'g%d' % (u - 4)) for u in range(4, 8)] + [(u, 'post') for u in range(8, 14)])
        order = {'g0': 10, 'g1': 11, 'g2': 12, 'g3': 13, 'post': 14}
        pos = [order.get(self.plan[u], self.plan[u]) for u in range(14)]
        assert pos == sorted(pos) and all(pos[u] >= 6 + u // 2 for u in range(10)) and 2 <= pre1 <= 4
        self.readout_done = set()
        self.ro = ro or {'t19': [0, 1], 'post': [2, 3, 4, 5, 6, 7], 'b0': [8, 9, 10, 11, 12, 13]}

    def stamp(self):
        if not self.stamps: return
        e = self.e
        e.wait_all(vm=False)
        e(f's_memrealtime s[{sST}:{sST+1}]')
        e(f's_memtime s[{sST2}:{sST2+1}]')
        e.force('s_waitcnt lgkmcnt(0)')
        e(f'v_writelane_b32 {V(vSTO)}, s{sST}, {self.nst}')
        e(f'v_writelane_b32 {V(vSTO)}, s{sST2}, {32 + self.nst}')
        self.nst += 1

    def stamp_flush(self):
        if not self.stamps: return
        if self.diag:
            idx, wg = self.diag
            self.e(f'''
            v_readlane_b32 s{sT0}, {V(vSTO)}, {idx}
            s_nop 4
            s_sub_u32 s{sT1}, s{sT0}, s100
            s_cmp_eq_u32 s{sT0}, 0
            s_cselect_b32 s{sT1}, 0, s{sT1}
            ''')
            if wg is not None:
                self.e(f's_cmp_eq_u32 s2, {wg}\ns_cselect_b32 s{sT1}, s{sT1}, 0')
            self.e(f'''
            s_lshl_b32 s{sT1}, s{sT1}, 2
            s_add_u32 s{sT1}, s{sT1}, 4000
            L_diag:
            s_memrealtime s[{sST}:{sST+1}]
            s_waitcnt lgkmcnt(0)
            s_sub_u32 s{sT0}, s{sST}, s100
            s_cmp_lt_u32 s{sT0}, s{sT1}
            s_cbranch_scc1 L_diag
            ''')
            return
        self.e(f'''
        s_lshl_b32 s{sT0}, s2, 2
        s_add_u32 s{sT0}, s{sT0}, s{sW}
        s_lshl_b32 s{sT0}, s{sT0}, 8
        s_add_u32 s{sT0}, s{sT0}, {STAMP_OFF}
        v_lshlrev_b32 {V(vT)}, 2, {V(vLANE)}
        buffer_store_dword {V(vSTO)}, {V(vT)}, {S(SSTAMP)}, s{sT0} offen
        ''')

    def entry(self):
        e = self.e
        if self.cpf:
            k = NAME + '_kernel'
            e(f'''
            s_sub_u32 s3, s2, 224
            s_cmp_ge_u32 s3, {self.cpf if self.cpf > 1 else 32}
            s_cbranch_scc1 L_nopf
            s_getpc_b64 s[4:5]
            L_pc:
            s_sub_u32 s4, s4, L_pc-{k}
            s_subb_u32 s5, s5, 0
            s_mov_b32 s6, L_codeend-{k}
            s_mov_b32 s7, 0x20000
            v_lshlrev_b32 {V(vT+1)}, 7, v0
            buffer_load_dword v255, {V(vT+1)}, s[4:7], 0 offen
            L_nopf:
            ''')
            e.vq = []
        if self.diag:
            e('s_memrealtime s[100:101]')
        e('s_cmp_ge_u32 s2, 256')
        e('s_cbranch_scc1 L_end')
        slot = {SX: 0, SW1: 8, SB1: 16, SW2: 24, SB2: 32, SOUT: 40, SDBG: 48, SH: 56}
        size = {SX: M * D * 2, SW1: D * F * 2, SB1: F * 2, SW2: F * D * 2, SB2: D * 2, SOUT: M * D * 2, SDBG: 256, SH: H_BYTES}
        for r in slot:
            e(f's_load_dwordx2 s[{r}:{r+1}], s[0:1], {slot[r]}')
        if self.stamps:
            e(f's_load_dwordx2 s[{SSTAMP}:{SSTAMP+1}], s[0:1], 56')
            e(f's_mov_b32 s{SSTAMP+2}, {64 << 20}')
            e(f's_mov_b32 s{SSTAMP+3}, 0x20000')
            e(f'v_mov_b32 {V(vSTO)}, 0')
        e(f'''
        v_lshrrev_b32 {V(vT)}, 6, v0
        v_and_b32 {V(vLANE)}, 63, v0
        v_readfirstlane_b32 s{sW}, {V(vT)}
        s_and_b32 s{sXCD}, s2, 7
        s_lshr_b32 s{sJ}, s2, 3
        ''')
        for r in slot:
            e(f's_mov_b32 s{r+2}, {size[r]}')
            e(f's_mov_b32 s{r+3}, 0x20000')
        e(f's_lshl_b32 s{sW4K}, s{sW}, 12')

    def dma(self, voff, srd, soff, ldsbase, tag):
        ops = [f's_add_u32 m0, s{sW4K}, {ldsbase}']
        for i in range(4):
            ops.append((f'buffer_load_dwordx4 {V(voff+i)}, {S(srd)}, s{soff} offen offset:{1024*i} lds', tag))
        return ops

    def put(self, ops):
        for x in ops:
            if callable(x): x()
            elif isinstance(x, tuple): self.e(x[0], x[1])
            else: self.e(x)

    @staticmethod
    def mix(*lists):
        items = []
        for k, l in enumerate(lists):
            for i, x in enumerate(l):
                items.append(((i + 0.5) / len(l), k, i, x))
        items.sort(key=lambda z: z[:3])
        return [z[3] for z in items]

    def p1_addr_dma(self):
        t = vT
        if self.mapb:
            self.e(f'''
            s_lshl_b32 s{sMT}, s{sXCD}, 1
            s_and_b32 s{sT0}, s{sJ}, 1
            s_add_u32 s{sMT}, s{sMT}, s{sT0}
            s_lshr_b32 s{sT1}, s{sJ}, 1
            s_mov_b32 s{sFT}, s{sT1}
            ''')
        else:
            self.e(f'''
            s_lshr_b32 s{sMT}, s{sXCD}, 1
            s_lshl_b32 s{sMT}, s{sMT}, 2
            s_and_b32 s{sT0}, s{sJ}, 3
            s_add_u32 s{sMT}, s{sMT}, s{sT0}
            s_and_b32 s{sFT}, s{sXCD}, 1
            s_mul_i32 s{sFT}, s{sFT}, 7
            s_lshr_b32 s{sT1}, s{sJ}, 2
            s_add_u32 s{sFT}, s{sFT}, s{sT1}
            ''')
        self.e(f'''
        s_mul_i32 s{sT0}, s{sT0}, {self.rot1[0]}
        s_mul_i32 s{sT1}, s{sT1}, {self.rot1[1]}
        s_mul_i32 s{sT2}, s{sXCD}, {self.rot1[2]}
        s_add_u32 s{sT0}, s{sT0}, s{sT1}
        s_add_u32 s{sT0}, s{sT0}, s{sT2}
        s_lshr_b32 s{sT0}, s{sT0}, 2
        s_mul_i32 s{sT1}, s{sT0}, 205
        s_lshr_b32 s{sT1}, s{sT1}, 11
        s_mul_i32 s{sT1}, s{sT1}, 10
        s_sub_u32 s{sT0}, s{sT0}, s{sT1}
        s_lshl_b32 s{sKX}, s{sT0}, 7
        s_mul_i32 s{sKW}, s{sT0}, {64*3456}
        s_lshl_b32 s{sT0}, s{sMT}, 2
        s_add_u32 s{sT0}, s{sT0}, s{sW}
        s_mul_i32 s{sT0}, s{sT0}, {32*1280}
        s_mul_i32 s{sT1}, s{sW}, {16*3456}
        s_lshl_b32 s{sT2}, s{sFT}, 8
        s_add_u32 s{sT1}, s{sT1}, s{sT2}
        s_sub_u32 s{sT2}, 3456, s{sT2}
        v_lshrrev_b32 {V(t)}, 3, {V(vLANE)}
        v_and_b32 {V(t+1)}, 7, {V(vLANE)}
        v_lshrrev_b32 {V(t+2)}, 1, {V(t)}
        v_xor_b32 {V(t+1)}, {V(t+1)}, {V(t+2)}
        v_lshlrev_b32 {V(t+1)}, 4, {V(t+1)}
        v_mul_u32_u24 {V(t)}, 1280, {V(t)}
        v_add_u32 {V(t)}, s{sT0}, {V(t)}
        v_add_u32 {V(vOX)}, {V(t)}, {V(t+1)}
        v_xor_b32 {V(t+1)}, 64, {V(t+1)}
        v_add_u32 {V(vOX+1)}, {V(t)}, {V(t+1)}
        v_add_u32 {V(vOX+1)}, {8*1280-1024}, {V(vOX+1)}
        v_add_u32 {V(vOX+2)}, {16*1280-2048}, {V(vOX)}
        v_add_u32 {V(vOX+3)}, {16*1280-2048}, {V(vOX+1)}
        v_lshrrev_b32 {V(t)}, 4, {V(vLANE)}
        v_and_b32 {V(t+1)}, 15, {V(vLANE)}
        v_lshlrev_b32 {V(t+2)}, 1, {V(t)}
        v_xor_b32 {V(t+1)}, {V(t+1)}, {V(t+2)}
        v_lshlrev_b32 {V(t+1)}, 4, {V(t+1)}
        v_xor_b32 {V(t+3)}, 0x80, {V(t+1)}
        v_mul_u32_u24 {V(t)}, 3456, {V(t)}
        v_mov_b32 {V(t+2)}, {OOB}
        v_add3_u32 {V(vOW)}, {V(t)}, {V(t+1)}, s{sT1}
        v_cmp_gt_u32 vcc, s{sT2}, {V(t+1)}
        v_add3_u32 {V(vOW+2)}, {V(t)}, {V(t+3)}, s{sT1}
        v_cndmask_b32 {V(vOW)}, {V(t+2)}, {V(vOW)}, vcc
        v_cmp_gt_u32 vcc, s{sT2}, {V(t+3)}
        v_add_u32 {V(vOW+1)}, 12800, {V(vOW)}
        v_cndmask_b32 {V(vOW+2)}, {V(t+2)}, {V(vOW+2)}, vcc
        v_add_u32 {V(vOW+3)}, {3*12800}, {V(vOW+2)}
        v_add_u32 {V(vOW+2)}, {2*12800}, {V(vOW+2)}
        s_lshr_b32 s{sT2}, s{sW}, 1
        s_lshl_b32 s{sT2}, s{sT2}, 7
        s_lshl_b32 s{sT3}, s{sFT}, 8
        s_add_u32 s{sT3}, s{sT2}, s{sT3}
        v_lshrrev_b32 {V(t)}, 4, {V(vLANE)}
        v_lshlrev_b32 {V(t)}, 3, {V(t)}
        v_add_u32 {V(vOB1)}, s{sT3}, {V(t)}
        ''')

    def p1_stage_dma(self, s):
        sl = (s % 5) * 32768
        ops = self.dma(vOX, SX, sKX, sl, ('st', s)) + self.dma(vOW, SW1, sKW, sl + 16384, ('st', s))
        if s < 9:
            ops += [f's_add_u32 s{sKX}, s{sKX}, 128', f's_add_u32 s{sKW}, s{sKW}, {64*3456}',
                    lambda: self.e(f's_cmp_eq_u32 s{sKX}, 1280\ns_cselect_b32 s{sKX}, 0, s{sKX}\ns_cselect_b32 s{sKW}, 0, s{sKW}')]
        return ops

    def p1_addr_rest(self):
        e = self.e; t = vT
        e(f'''
        s_and_b32 s{sT0}, s{sW}, 1
        s_lshr_b32 s{sT1}, s{sW}, 1
        s_lshl_b32 s{sT2}, s{sT0}, 13
        v_and_b32 {V(t)}, 15, {V(vLANE)}
        v_lshrrev_b32 {V(t+1)}, 4, {V(vLANE)}
        v_bfe_u32 {V(t+2)}, {V(vLANE)}, 1, 3
        v_lshlrev_b32 {V(t)}, 7, {V(t)}
        v_xor_b32 {V(t+2)}, {V(t+1)}, {V(t+2)}
        v_lshl_add_u32 {V(t)}, {V(t+2)}, 4, {V(t)}
        v_add_u32 {V(vLX)}, s{sT2}, {V(t)}
        v_xor_b32 {V(vLX+1)}, 64, {V(vLX)}
        v_bfe_u32 {V(t)}, {V(vLANE)}, 2, 2
        v_lshl_add_u32 {V(t+2)}, {V(t+1)}, 3, {V(t)}
        v_lshlrev_b32 {V(t+2)}, 8, {V(t+2)}
        v_and_b32 {V(t+3)}, 3, {V(vLANE)}
        v_lshl_add_u32 {V(t+2)}, {V(t+3)}, 3, {V(t+2)}
        v_add_u32 {V(t+2)}, 16384, {V(t+2)}
        v_and_b32 {V(t+3)}, 1, {V(t+1)}
        v_lshl_add_u32 {V(t)}, {V(t+3)}, 2, {V(t)}
        s_lshl_b32 s{sT2}, s{sT1}, 2
        ''')
        for fb in range(4):
            e(f'''
            s_add_u32 s{sT3}, s{sT2}, {fb}
            v_xor_b32 {V(t+3)}, s{sT3}, {V(t)}
            v_lshl_add_u32 {V(vLW+fb)}, {V(t+3)}, 5, {V(t+2)}
            ''')
        for st in (1, 2):
            for k in range(2): e(f'v_add_u32 {V(vLX+2*st+k)}, {65536*st}, {V(vLX+k)}')
            for k in range(4): e(f'v_add_u32 {V(vLW+4*st+k)}, {65536*st}, {V(vLW+k)}')
        e(f'''
        s_lshl_b32 s{sT2}, s{sMT}, 3
        s_lshl_b32 s{sT3}, s{sT0}, 2
        s_add_u32 s{sT2}, s{sT2}, s{sT3}
        s_mul_i32 s{sT2}, s{sT2}, 54
        s_lshl_b32 s{sT3}, s{sFT}, 2
        s_add_u32 s{sT2}, s{sT2}, s{sT3}
        s_lshl_b32 s{sT3}, s{sT1}, 1
        s_add_u32 s{sT2}, s{sT2}, s{sT3}
        s_lshl_b32 s{sT2}, s{sT2}, 10
        s_lshl_b32 s{sT3}, s{sFT}, 1
        s_add_u32 s{sT3}, s{sT3}, s{sT1}
        s_cmp_ge_u32 s{sT3}, 27
        s_cselect_b32 s{sT2}, {OOB}, s{sT2}
        v_lshlrev_b32 {V(t)}, 4, {V(vLANE)}
        v_add_u32 {V(vOH)}, s{sT2}, {V(t)}
        s_lshl_b32 s{sT2}, s{sMT}, 1
        s_add_u32 s{sT2}, s{sT2}, s{sT0}
        s_lshl_b32 s{sT2}, s{sT2}, {self.fsh + 1}
        s_lshl2_add_u32 s{sT2}, s{sT3}, s{sT2}
        v_mov_b32 {V(vFST)}, s{sT2}
        s_mov_b32 s{sMB1}, {55296}
        s_mov_b32 s{sMB2}, {2*55296}
        s_mov_b32 s{sMB3}, {3*55296}
        v_mov_b32 {V(vC0)}, {f32(C0)}
        v_mov_b32 {V(vC0+1)}, {f32(C0)}
        v_mov_b32 {V(vC1)}, {f32(C1)}
        v_mov_b32 {V(vC1+1)}, {f32(C1)}
        v_mov_b32 {V(vONE)}, 1.0
        v_mov_b32 {V(vONE+1)}, 1.0
        ''')

    def p1_reads(self, t):
        s, ks = divmod(t, 2)
        sl = s % 5; st = sl // 2; off = (sl % 2) * 32768
        fa = vF + 32 * (t & 1); fbb = fa + 16
        r = []
        def ra(fb):
            for jh in range(2):
                r.append(f'ds_read_b64_tr_b16 {V(fa+4*fb+2*jh, 2)}, {V(vLW+4*st+fb)} offset:{off + (32*ks+4*jh)*256}')
        ra(0)
        for mb in range(4):
            r.append(f'ds_read_b128 {V(fbb+4*mb, 4)}, {V(vLX+2*st+ks)} offset:{off + 2048*mb}')
        ra(1); ra(2); ra(3)
        return r

    def p1_mfmas(self, t):
        fa = vF + 32 * (t & 1); fbb = fa + 16
        r = []
        for fb in range(4):
            for mb in range(4):
                acc = vACC + 16 * fb + 4 * mb
                c = V(vBIAS + 4 * fb, 4) if t == 0 else V(acc, 4)
                r.append(f'v_mfma_f32_16x16x32_bf16 {V(acc,4)}, {V(fa+4*fb,4)}, {V(fbb+4*mb,4)}, {c}')
        return r

    def gelu8(self, x0, x1, pk):
        g = vG; r = []
        P = lambda n: V(n, 2)
        xs = [x0, x0 + 2, x1, x1 + 2]
        for j in range(4): r.append(f'v_pk_mul_f32 {P(g+2*j)}, {P(xs[j])}, {P(xs[j])}')
        for j in range(4): r.append(f'v_pk_fma_f32 {P(g+2*j)}, {P(g+2*j)}, {P(vC1)}, {P(vC0)}')
        for j in range(4): r.append(f'v_pk_mul_f32 {P(g+2*j)}, {P(xs[j])}, {P(g+2*j)}')
        for j in range(8): r.append(f'v_exp_f32 {V(g+j)}, {V(g+j)}')
        for j in range(4): r.append(f'v_pk_add_f32 {P(g+2*j)}, {P(g+2*j)}, {P(vONE)}')
        for j in range(8): r.append(f'v_rcp_f32 {V(g+j)}, {V(g+j)}')
        for j in range(4): r.append(f'v_pk_mul_f32 {P(g+2*j)}, {P(xs[j])}, {P(g+2*j)}')
        for j in range(4): r.append(f'v_cvt_pk_bf16_f32 {V(pk+j)}, {V(g+2*j)}, {V(g+2*j+1)}')
        return r

    def at(self, where):
        return [op for u in range(14) if self.plan[u] == where for op in self.w2_dma(u)]

    def phase1(self):
        e = self.e
        self.p1_addr_dma()
        e.force('s_waitcnt lgkmcnt(0)')
        self.stamp()
        for fb in range(4):
            e(f'buffer_load_dwordx2 {V(vRAW+2*fb,2)}, {V(vOB1)}, {S(SB1)}, 0 offen offset:{32*fb}')
        self.put(self.p1_stage_dma(0))
        if '0' in self.fine: self.stamp()
        self.p1_addr_rest()
        self.p2_addr()
        if '0' in self.fine: self.stamp()
        for s in range(1, self.pre1):
            self.put(self.p1_stage_dma(s))
        for i in range(8):
            e(f'v_lshlrev_b32 {V(vBIAS+2*i)}, 16, {V(vRAW+i)}')
            e(f'v_and_b32 {V(vBIAS+2*i+1)}, 0xffff0000, {V(vRAW+i)}')
        if '0' in self.fine:
            self.stamp(); e.wait_tag(('st', 0)); self.stamp()
        e.wait_tag(('st', 0))
        e('s_barrier')
        self.stamp()
        late = [self.b2_load]
        nl = (len(late) + 9) // 10
        self.put(self.p1_reads(0))
        for s in range(10):
            dm = (self.p1_stage_dma(s + self.pre1) if s + self.pre1 < 10 else []) + self.at(s)
            q = (len(dm) + 1) // 2
            for ks in range(2):
                t = 2 * s + ks
                mf = self.p1_mfmas(t)
                if ks == 1 and s < 9:
                    e.wait_all(vm=False)
                    e.wait_tag(('st', s + 1))
                    e('s_barrier')
                rd = self.p1_reads(t + 1) if t < 19 else []
                part = dm[q * ks: q * ks + q]
                misc = late[nl * (t - 1): nl * t] if t >= 1 else []
                if t == 16: misc = [f'v_mov_b32 {V(vT)}, 0', f'buffer_load_dword {V(vDBG)}, {V(vT)}, {S(SDBG)}, 0 offen sc1']
                if t == 19: misc = self.readout(self.ro['t19'])
                interleave(e, mf[:14], self.mix(*[l for l in (rd, part, misc) if l]))
                self.put(mf[14:])
            if '1' in self.fine and s < 9: self.stamp()
        e('s_barrier')
        self.flg_srd()
        self.b2_unpack()
        self.stamp()
        n = 0
        for mb in range(4):
            extra = self.mix(*[l for l in (self.readout(self.ro.get('g%d' % mb, [])), self.at('g%d' % mb)) if l])
            q = (len(extra) + 1) // 2
            for P in range(2):
                pk = vPK + 4 * (n % 4)
                body = self.gelu8(vACC + 32 * P + 4 * mb, vACC + 32 * P + 16 + 4 * mb, pk)
                interleave(e, body, extra[q * P: q * P + q])
                so = '0' if mb == 0 else f's{sMB1 + mb - 1}'
                e(f'buffer_store_dwordx4 {V(pk,4)}, {V(vOH)}, {S(SH)}, {so} offen offset:{P*1024} {self.hflags}', 'hE' if mb < 2 else 'hL')
                n += 1
                if n == self.fe:
                    self.dbg_check('L_dbg')
                    self.flag('hE', 0)
                    e(f'''
                    s_add_u32 s{sT0}, s{sXCD}, 64
                    s_lshl_b32 s{sT0}, s{sT0}, {self.fsh}
                    s_or_b32 s{sT1}, s{sJ}, s{sW}
                    s_cmp_eq_u32 s{sT1}, 0
                    s_cselect_b32 s{sT0}, s{sT0}, {OOB}
                    v_mov_b32 {V(vT)}, s{sT0}
                    s_mov_b64 exec, 1
                    buffer_store_dword {V(vT+1)}, {V(vT)}, {S(SFLG)}, 0 offen sc1
                    s_mov_b64 exec, -1
                    ''')
        self.stamp()

    def dbg_check(self, label):
        e = self.e
        e(f'v_cmp_gt_u32 vcc, 32, {V(vDBG)}')
        e(f's_cbranch_vccz {label}_ok')
        vq, hist = list(e.vq), list(e.hist)
        e(f'v_mov_b32 {V(vT)}, 0')
        self.spin(label, f'buffer_load_dword {V(vDBG)}, {V(vT)}, {S(SDBG)}, 0 offen sc1', f'v_cmp_gt_u32 vcc, 32, {V(vDBG)}')
        e.vq, e.hist = vq, hist

    def flag(self, tag, late):
        e = self.e
        e(f'v_mov_b32 {V(vT+1)}, 1')
        e.wait_tag(tag)
        e(f"""
        s_mov_b64 exec, 1
        buffer_store_dword {V(vT+1)}, {V(vFST)}, {S(SFLG)}, 0 offen offset:{late << self.fsh} sc1
        s_mov_b64 exec, -1
        """)

    def poll_issue(self, late):
        return f'buffer_load_dword {V(vPOL)}, {V(vFLL if late else vFL)}, {S(SFLG)}, 0 offen sc1'

    def poll_check(self, label, late):
        e = self.e
        e(f'v_cmp_ne_u32 vcc, 1, {V(vPOL)}')
        e(f's_cbranch_vccz {label}_ok')
        vq, hist = list(e.vq), list(e.hist)
        self.spin(label, self.poll_issue(late), f'v_cmp_ne_u32 vcc, 1, {V(vPOL)}')
        e.vq, e.hist = vq, hist

    def p2_addr_ops(self):
        lines = []
        real = self.e
        self.e = lambda txt, tag=None: lines.extend(l.strip() for l in txt.strip('\n').split('\n') if l.strip())
        self.p2_addr()
        self.e = real
        ops = []
        i = 0
        while i < len(lines):
            j = i + 1
            if lines[i].startswith('s_cmp'):
                last = i
                for k in range(i + 1, min(len(lines), i + 4)):
                    if lines[k].startswith('s_cselect'): last = k
                    elif not lines[k].startswith('s_mov'): break
                j = last + 1
            ops.append('\n'.join(lines[i:j])); i = j
        return ops

    def p2_addr(self):
        e = self.e; t = vT
        if self.map2 == 'B':
            e(f'''
            s_mul_i32 s{sT}, s{sXCD}, 28
            s_add_u32 s{sT}, s{sT}, s{sJ}
            s_cmp_ge_u32 s{sT}, 220
            s_cselect_b32 s{sT}, 250, s{sT}
            s_lshl2_add_u32 s{sT1}, s{sXCD}, s{sJ}
            s_add_u32 s{sT1}, s{sT1}, {220 - 28}
            s_cmp_ge_u32 s{sJ}, 28
            s_cselect_b32 s{sT}, s{sT1}, s{sT}
            s_mul_i32 s{sRT}, s{sT}, 205
            s_lshr_b32 s{sRT}, s{sRT}, 11
            s_mul_i32 s{sT0}, s{sRT}, 10
            s_sub_u32 s{sCT}, s{sT}, s{sT0}
            s_mov_b32 s{sT1}, s{sCT}
            s_lshr_b32 s{sT}, s{sT}, 1
            s_mul_i32 s{sT0}, s{sRT}, 5
            ''')
        else:
            e(f'''
            s_lshr_b32 s{sT1}, s{sXCD}, 1
            s_mul_i32 s{sT}, s{sT1}, 28
            s_add_u32 s{sT}, s{sT}, s{sJ}
            s_cmp_ge_u32 s{sT}, 110
            s_cselect_b32 s{sT}, 125, s{sT}
            s_lshl_b32 s{sT1}, s{sT1}, 2
            s_add_u32 s{sT1}, s{sT1}, s{sJ}
            s_add_u32 s{sT1}, s{sT1}, {110 - 28}
            s_cmp_ge_u32 s{sJ}, 28
            s_cselect_b32 s{sT}, s{sT1}, s{sT}
            s_mul_i32 s{sRT}, s{sT}, 205
            s_lshr_b32 s{sRT}, s{sRT}, 10
            s_mul_i32 s{sT0}, s{sRT}, 5
            s_sub_u32 s{sT1}, s{sT}, s{sT0}
            s_and_b32 s{sCT}, s{sXCD}, 1
            s_mul_i32 s{sCT}, s{sCT}, 5
            s_add_u32 s{sCT}, s{sCT}, s{sT1}
            ''')
        if True:
            e(f'''
            s_cmp_ge_u32 s{sRT}, 22
            s_cselect_b32 s{sNB}, 6, 5
            s_mov_b32 s{sU}, s{sT1}
            s_add_u32 s{sT2}, s{sT0}, 1
            s_lshr_b32 s{sT2}, s{sT2}, 1
            s_lshr_b32 s{sT3}, s{sT0}, 1
            s_and_b32 s{sNE}, s{sRT}, 1
            s_sub_u32 s{sNE}, 3, s{sNE}
            s_mul_i32 s{sT0}, s{sRT}, 3
            s_sub_u32 s{sT0}, s{sT0}, 11
            s_cmp_ge_u32 s{sRT}, 22
            s_cselect_b32 s{sT2}, s{sT0}, s{sT2}
            s_cselect_b32 s{sT3}, s{sT0}, s{sT3}
            s_cselect_b32 s{sNE}, 3, s{sNE}
            ''')
        e(f'''
        v_and_b32 {V(t)}, 31, {V(vLANE)}
        v_min_u32 {V(t)}, 26, {V(t)}
        v_lshlrev_b32 {V(t)}, 2, {V(t)}
        v_lshrrev_b32 {V(t+1)}, 5, {V(vLANE)}
        s_lshr_b32 s{sT0}, s{sT2}, 1
        s_add_u32 s{sT1}, s{sT2}, s{sNE}
        s_sub_u32 s{sT1}, s{sT1}, 1
        s_lshr_b32 s{sT1}, s{sT1}, 1
        s_sub_u32 s{sT1}, s{sT1}, s{sT0}
        s_lshl_b32 s{sT0}, s{sT0}, {self.fsh + 1}
        s_lshl_b32 s{sT1}, s{sT1}, {self.fsh + 1}
        v_mul_u32_u24 {V(t+2)}, s{sT1}, {V(t+1)}
        v_add3_u32 {V(vFL)}, {V(t)}, {V(t+2)}, s{sT0}
        s_lshr_b32 s{sT0}, s{sT3}, 1
        s_add_u32 s{sT1}, s{sT3}, s{sNB}
        s_sub_u32 s{sT1}, s{sT1}, s{sNE}
        s_sub_u32 s{sT1}, s{sT1}, 1
        s_lshr_b32 s{sT1}, s{sT1}, 1
        s_sub_u32 s{sT1}, s{sT1}, s{sT0}
        s_lshl_b32 s{sT0}, s{sT0}, {self.fsh + 1}
        s_add_u32 s{sT0}, s{sT0}, {1 << self.fsh}
        s_lshl_b32 s{sT1}, s{sT1}, {self.fsh + 1}
        v_mul_u32_u24 {V(t+2)}, s{sT1}, {V(t+1)}
        v_add3_u32 {V(vFLL)}, {V(t)}, {V(t+2)}, s{sT0}
        s_sub_u32 s{sT3}, s{sT3}, s{sNE}
        ''')
        for bb in range(6):
            e(f'''
            s_cmp_gt_u32 s{sNE}, {bb}
            s_cselect_b32 s{sT0}, s{sT2}, s{sT3}
            s_cselect_b32 s{sT1}, 0, 2
            s_add_u32 s{sT0}, s{sT0}, {bb}
            s_bitcmp1_b32 s{sT0}, 0
            s_addc_u32 s{sT1}, s{sT1}, 0
            s_lshr_b32 s{sT0}, s{sT0}, 1
            s_lshl2_add_u32 s{sT0}, s{sT0}, s{sT1}
            s_mul_i32 s{sHB+bb}, s{sT0}, 55296
            s_mul_i32 s{sOB+bb}, s{sT0}, {16*1280}
            ''')
        e(f'''
        s_cmp_eq_u32 s{sNB}, 6
        s_cselect_b32 s{sHB+5}, s{sHB+5}, {OOB}
        s_mov_b32 s{sT1}, s{sU}
        ''')
        e(f'''
        s_mul_i32 s{sT1}, s{sT1}, {self.rot2[0]}
        s_mul_i32 s{sT0}, s{sRT}, {self.rot2[1]}
        s_add_u32 s{sT0}, s{sT0}, s{sT1}
        s_lshr_b32 s{sT0}, s{sT0}, 2
        s_mul_i32 s{sT1}, s{sT0}, 1261
        s_lshr_b32 s{sT1}, s{sT1}, 14
        s_mul_i32 s{sT1}, s{sT1}, 13
        s_sub_u32 s{sT0}, s{sT0}, s{sT1}
        s_mul_i32 s{sU}, s{sT0}, 163840
        s_lshl_b32 s{sHS}, s{sT0}, 12
        ''')
        for u in range(1, 13):
            e(f'''
            s_add_u32 s{sHS+u}, s{sHS+u-1}, 4096
            s_cmp_eq_u32 s{sHS+u}, {13*4096}
            s_cselect_b32 s{sHS+u}, 0, s{sHS+u}
            ''')
        e(f'''
        s_mov_b32 s{sHS+13}, {13*4096}
        s_cmp_lt_u32 s{sW}, 2
        s_cselect_b32 s{sU13}, 0, {OOB}
        s_mul_i32 s{sT0}, s{sW}, {32*1280}
        s_lshl_b32 s{sT1}, s{sCT}, 7
        s_add_u32 s{sT0}, s{sT0}, s{sT1}
        v_lshrrev_b32 {V(t)}, 3, {V(vLANE)}
        v_and_b32 {V(t+1)}, 7, {V(vLANE)}
        v_and_b32 {V(t+2)}, 6, {V(t)}
        v_xor_b32 {V(t+1)}, {V(t+1)}, {V(t+2)}
        v_lshlrev_b32 {V(t+1)}, 4, {V(t+1)}
        v_mul_u32_u24 {V(t+2)}, 1280, {V(t)}
        v_add3_u32 {V(vOW2)}, {V(t+2)}, {V(t+1)}, s{sT0}
        v_add_u32 {V(vOW2+1)}, 9216, {V(vOW2)}
        v_add_u32 {V(vOW2+2)}, {2*9216}, {V(vOW2)}
        v_add_u32 {V(vOW2+3)}, {3*9216}, {V(vOW2)}
        v_and_b32 {V(t)}, 3, {V(t)}
        v_lshrrev_b32 {V(t+1)}, 2, {V(vLANE)}
        v_lshlrev_b32 {V(t+1)}, 7, {V(t+1)}
        v_and_b32 {V(t+2)}, 3, {V(vLANE)}
        v_lshl_add_u32 {V(t+1)}, {V(t+2)}, 3, {V(t+1)}
        v_add_u32 {V(t+1)}, s{sW4K}, {V(t+1)}
        ''')
        for d in range(4):
            e(f'''
            v_xor_b32 {V(t+3)}, {d}, {V(t)}
            v_lshl_add_u32 {V(vLW2+d)}, {V(t+3)}, 5, {V(t+1)}
            ''')
        for st in (1, 2):
            for d in range(4): e(f'v_add_u32 {V(vLW2+4*st+d)}, {65536*st}, {V(vLW2+d)}')
        e(f'''
        s_lshl_b32 s{sT0}, s{sW}, 10
        v_lshl_add_u32 {V(vHB)}, {V(vLANE)}, 4, s{sT0}
        v_add_u32 {V(vH13B)}, s{sU13}, {V(vHB)}
        v_and_b32 {V(t)}, 15, {V(vLANE)}
        v_lshrrev_b32 {V(t+1)}, 4, {V(vLANE)}
        s_lshl_b32 s{sT0}, s{sCT}, 7
        v_lshl_add_u32 {V(vOB2)}, {V(t)}, 3, s{sT0}
        s_mul_i32 s{sT1}, s{sW}, {4*1280}
        v_mul_u32_u24 {V(t+2)}, 1280, {V(t+1)}
        v_add3_u32 {V(vOOB)}, {V(t+2)}, {V(vOB2)}, s{sT1}
        s_add_u32 s{sT0}, s{sW4K}, 65536
        v_and_b32 {V(t+2)}, 7, {V(t)}
        v_xor_b32 {V(t+2)}, {V(t+2)}, {V(t+1)}
        v_lshlrev_b32 {V(t+2)}, 4, {V(t+2)}
        v_lshl_add_u32 {V(t+2)}, {V(t)}, 8, {V(t+2)}
        v_add_u32 {V(vEXW)}, s{sT0}, {V(t+2)}
        v_xor_b32 {V(vEXW+1)}, 64, {V(vEXW)}
        s_lshl_b32 s{sT0}, s{sW}, 2
        v_add_u32 {V(t+2)}, s{sT0}, {V(t+1)}
        v_and_b32 {V(t+3)}, 7, {V(t+2)}
        v_xor_b32 {V(t+3)}, {V(t+3)}, {V(t)}
        v_lshlrev_b32 {V(t+3)}, 4, {V(t+3)}
        v_lshl_add_u32 {V(t+3)}, {V(t+2)}, 8, {V(t+3)}
        v_add_u32 {V(vEXR)}, 65536, {V(t+3)}
        ''')

    @staticmethod
    def slot(u):
        return u if u < 10 else u - 10

    def w2_dma(self, u):
        ops = []
        if u >= 10:
            ops.append(lambda: self.slot_free(u - 10))
        if u == 13:
            ops += [f'v_add_u32 {V(vOW2+i)}, s{sU13}, {V(vOW2+i)}' for i in range(4)] + [f's_mov_b32 s{sU}, {13*163840}']
        ops += self.dma(vOW2, SW2, sU, self.slot(u) * 16384, ('u', u))
        if u < 12:
            ops += [f's_add_u32 s{sU}, s{sU}, 163840', lambda: self.e(f's_cmp_eq_u32 s{sU}, {13*163840}\ns_cselect_b32 s{sU}, 0, s{sU}')]
        return ops

    def slot_free(self, u):
        assert u in self.readout_done
        regs = {('a', 16 * u + i) for i in range(16)}
        idx = [i for i, d in enumerate(self.e.lq) if d & regs]
        if idx: self.e._wait(lg=len(self.e.lq) - 1 - idx[-1])

    def readout(self, units):
        r = []
        for u in units:
            z = self.slot(u); st = z // 4; off = (z % 4) * 16384
            r.append(lambda u=u: self.e.wait_tag(('u', u)))
            r += [f'ds_read_b64_tr_b16 {A(16*u+4*d+2*jh, 2)}, {V(vLW2+4*st+d)} offset:{off + 2048*jh}' for d in range(4) for jh in range(2)]
            r.append(lambda u=u: self.readout_done.add(u))
        return r

    def h_load(self, n):
        b, u = divmod(n, 14)
        ops = []
        if u == 0:
            if b == 2: ops.append(lambda: self.poll_check('L_pollL', 1))
            ops += [f'v_add_u32 {V(vOHL)}, s{sHB+b}, {V(vHB)}', f'v_add_u32 {V(vOH13)}, s{sHB+b}, {V(vH13B)}']
        if n == 28 - self.pl: ops.append(self.poll_issue(1))
        ops.append(f'buffer_load_dwordx4 {V(vH+4*u,4)}, {V(vOH13 if u == 13 else vOHL)}, {S(SH)}, s{sHS+u} offen {self.hflags}')
        return ops

    def b2_load(self):
        self.e(f'buffer_load_dwordx2 {V(vRAW2,2)}, {V(vOB2)}, {S(SB2)}, 0 offen')

    def b2_unpack(self):
        for i in range(2):
            self.e(f'v_lshlrev_b32 {V(vB2+2*i)}, 16, {V(vRAW2+i)}')
            self.e(f'v_and_b32 {V(vB2+2*i+1)}, 0xffff0000, {V(vRAW2+i)}')

    def fin_write(self, b):
        acc = vACC2 + 16 * (b & 1)
        return [f'ds_write_b128 {V(vEXW+(d&1))}, {V(acc+4*d,4)} offset:{16384*(b&1) + 128*(d>>1)}' for d in range(4)]

    def fin_bar(self):
        return [lambda: (self.e.wait_all(vm=False), self.e('s_barrier'))]

    def fin_read(self, b):
        return [f'ds_read_b128 {V(vRX+4*p,4)}, {V(vEXR)} offset:{16384*(b&1) + 4096*p}' for p in range(4)]

    def fin_out(self, b):
        r = []
        for j in range(4): r.append(f'v_add_f32 {V(vRX+j)}, {V(vRX+j)}, {V(vRX+4+j)}')
        for j in range(4): r.append(f'v_add_f32 {V(vRX+8+j)}, {V(vRX+8+j)}, {V(vRX+12+j)}')
        for j in range(4): r.append(f'v_add_f32 {V(vRX+j)}, {V(vRX+j)}, {V(vB2+j)}')
        for j in range(4): r.append(f'v_add_f32 {V(vRX+j)}, {V(vRX+j)}, {V(vRX+8+j)}')
        pk = vPK2 + 2 * (b & 1)
        for j in range(2): r.append(f'v_cvt_pk_bf16_f32 {V(pk+j)}, {V(vRX+2*j)}, {V(vRX+2*j+1)}')
        r.append(f'buffer_store_dwordx2 {V(pk,2)}, {V(vOOB)}, {S(SOUT)}, s{sOB+b} offen {self.oflags}')
        return r

    def block(self, b, last):
        e = self.e
        for u in range(14):
            n = 14 * b + u
            fill = []
            for _ in range(2):
                if self.issued < min(last, n + 1 + self.la):
                    fill += self.h_load(self.issued); self.issued += 1
            if b == 0:
                nb0 = len(self.ro['b0'])
                for k, uu in enumerate(self.ro['b0']):
                    if u == max(0, uu - 7): fill += self.readout([uu])
            if b > 0:
                if 1 <= u <= 4: fill += self.fin_write(b - 1)[u - 1: u]
                if u == 6: fill += self.fin_bar() + self.fin_read(b - 1)[:2]
                if u == 7: fill += self.fin_read(b - 1)[2:]
                if u >= 9: fill += self.fin_out(b - 1)[4 * (u - 9): 4 * (u - 8)]
            acc = vACC2 + 16 * (b & 1)
            mf = [f'v_mfma_f32_16x16x32_bf16 {V(acc+4*d,4)}, {A(16*u+4*d,4)}, {V(vH+4*u,4)}, {V(acc+4*d,4) if u else 0}' for d in range(4)]
            interleave(e, mf, fill)

    def tail(self, b):
        self.stamp()
        self.put(self.fin_write(b) + self.fin_bar() + self.fin_read(b) + self.fin_out(b))
        if self.stamps: self.e.wait_all()
        self.stamp()

    def phase2(self):
        e = self.e
        for n in range(self.hpre): self.put(self.h_load(n))
        self.issued = self.hpre
        for b in range(5):
            self.block(b, 84)
            if '2' in self.fine and b < 4: self.stamp()
        e(f's_cmp_eq_u32 s{sNB}, 6')
        e('s_cbranch_scc1 L_six')
        saved = (list(e.vq), list(e.lq), list(e.hist), self.nst)
        self.tail(4)
        e('s_branch L_fin')
        e.label('L_six')
        e.vq, e.lq, e.hist, self.nst = saved
        self.block(5, 84)
        self.tail(5)

    def spin(self, label, load, check):
        e = self.e
        e(f's_mov_b32 s{sSPIN}, 0')
        e.label(label)
        e(load)
        e.force('s_waitcnt vmcnt(0)')
        e(check)
        e(f's_cbranch_vccz {label}_ok')
        if self.psleep: e(f's_sleep {self.psleep}')
        e(f's_add_u32 s{sSPIN}, s{sSPIN}, 1')
        e(f's_cmp_lt_u32 s{sSPIN}, 200000')
        e(f's_cbranch_scc1 {label}')
        e.label(label + '_ok')

    def flg_srd(self):
        self.e(f'''
        s_add_u32 s{SFLG}, s{SH}, {FLG_OFF}
        s_addc_u32 s{SFLG+1}, s{SH+1}, 0
        s_mov_b32 s{SFLG+2}, {96 << self.fsh}
        s_mov_b32 s{SFLG+3}, 0x20000
        ''')

    def touch_w2(self):
        e = self.e; t = vT
        if self.map2 == 'B':
            e(f'''
            s_sub_u32 s{sT0}, s{sJ}, 28
            s_lshl_b32 s{sT0}, s{sT0}, 2
            s_add_u32 s{sT0}, s{sT0}, s{sW}
            s_mul_i32 s{sT0}, s{sT0}, {1080*128}
            s_mul_i32 s{sT1}, s{sXCD}, 135
            v_add_u32 {V(t)}, s{sT1}, {V(vLANE)}
            ''')
            for n in range(17):
                e(f'''
                v_subrev_u32 {V(t+1)}, 1080, {V(t)}
                v_min_u32 {V(t+1)}, {V(t+1)}, {V(t)}
                v_lshlrev_b32 {V(t+1)}, 7, {V(t+1)}
                buffer_load_dword {V(vF+n)}, {V(t+1)}, {S(SW2)}, s{sT0} offen
                v_add_u32 {V(t)}, 64, {V(t)}
                ''')
            return
        e(f'''
        s_sub_u32 s{sT0}, s{sJ}, 28
        s_lshl_b32 s{sT0}, s{sT0}, 2
        s_add_u32 s{sT0}, s{sT0}, s{sW}
        s_mul_i32 s{sT0}, s{sT0}, 540
        s_lshr_b32 s{sT1}, s{sXCD}, 1
        s_mul_i32 s{sT1}, s{sT1}, 135
        s_and_b32 s{sT2}, s{sXCD}, 1
        s_mul_i32 s{sT2}, s{sT2}, 640
        v_add_u32 {V(t)}, s{sT1}, {V(vLANE)}
        ''')
        for n in range(9):
            e(f'''
            v_subrev_u32 {V(t+1)}, 540, {V(t)}
            v_min_u32 {V(t+1)}, {V(t+1)}, {V(t)}
            v_add_u32 {V(t+1)}, s{sT0}, {V(t+1)}
            v_mul_u32_u24 {V(t+2)}, 52429, {V(t+1)}
            v_lshrrev_b32 {V(t+2)}, 18, {V(t+2)}
            v_mul_u32_u24 {V(t+2)}, 640, {V(t+2)}
            v_lshl_add_u32 {V(t+1)}, {V(t+1)}, 7, {V(t+2)}
            buffer_load_dword {V(vF+n)}, {V(t+1)}, {S(SW2)}, s{sT2} offen
            v_add_u32 {V(t)}, 64, {V(t)}
            ''')

    def build(self):
        e = self.e
        self.entry()
        e(f's_cmp_ge_u32 s{sJ}, 28')
        e('s_cbranch_scc1 L_idle1')
        self.phase1()
        if self.pe == 0: e(self.poll_issue(0))
        pre = [u for u in self.ro['post'] if u < 4]
        self.put(self.readout(pre))
        if self.flf: self.flag('hL', 1)
        self.put(self.at('post'))
        if self.pe == 1: e(self.poll_issue(0))
        self.put(self.readout([u for u in self.ro['post'] if u >= 4]))
        if not self.flf: self.flag('hL', 1)
        e(f's_cmp_ge_u32 s{sT}, 125')
        e('s_cbranch_scc1 L_fin')
        e.wait_all(vm=False)
        self.stamp()
        self.poll_check('L_pollE', 0)
        self.join_vq = list(e.vq)
        e('s_branch L_poll0')
        nst_join = self.nst
        e.label('L_idle1')
        e.vq = []; e.lq = []; e.hist = []; self.readout_done = set()
        e.force('s_waitcnt lgkmcnt(0)')
        self.flg_srd()
        e(f'''
        s_cmp_lg_u32 s{sW}, 0
        s_cbranch_scc1 L_noclear
        s_sub_u32 s{sT0}, s2, 224
        s_mul_i32 s{sT0}, s{sT0}, {3 << self.fsh}
        v_lshrrev_b32 {V(vT)}, 3, {V(vLANE)}
        v_lshlrev_b32 {V(vT)}, {self.fsh}, {V(vT)}
        v_and_b32 {V(vT+1)}, 7, {V(vLANE)}
        v_lshl_add_u32 {V(vT)}, {V(vT+1)}, 4, {V(vT)}
        v_add_u32 {V(vT)}, s{sT0}, {V(vT)}
        v_mov_b32 {V(vT+2)}, 0
        v_mov_b32 {V(vT+3)}, 0
        v_mov_b32 {V(vT+4)}, 0
        v_mov_b32 {V(vT+5)}, 0
        v_mov_b32 {V(vT+6)}, 1
        s_mov_b64 exec, 0xffffff
        buffer_store_dwordx4 {V(vT+2,4)}, {V(vT)}, {S(SFLG)}, 0 offen sc1
        s_mov_b64 exec, -1
        ''')
        e.force('s_waitcnt vmcnt(0)')
        e(f'''
        s_mov_b64 exec, 1
        buffer_atomic_add {V(vT+6)}, {V(vT+2)}, {S(SDBG)}, 0 offen sc1
        s_mov_b64 exec, -1
        ''')
        e.label('L_noclear')
        if self.touch and not self.tlate: self.touch_w2()
        self.p2_addr()
        e(f's_cmp_ge_u32 s{sT}, 125')
        e('s_cbranch_scc1 L_fin2' if self.tlate else 's_cbranch_scc1 L_fin')
        self.b2_load()
        for u in range(10): self.put(self.w2_dma(u))
        self.b2_unpack()
        self.put(self.readout(range(4)))
        for u in range(10, 14): self.put(self.w2_dma(u))
        self.put(self.readout([u for u in range(4, 14) if u not in self.ro['b0']]))
        e.wait_all()
        if self.touch and self.tlate: self.touch_w2()
        e(f'v_mov_b32 {V(vT)}, 0')
        self.spin('L_dbg2', f'buffer_load_dword {V(vDBG)}, {V(vT)}, {S(SDBG)}, 0 offen sc1', f'v_cmp_gt_u32 vcc, 32, {V(vDBG)}')
        e(f's_cmp_lg_u32 s{sW}, 0')
        e('s_cbranch_scc1 L_poll_ok')
        e(f'''
        s_add_u32 s{sT0}, s{sXCD}, 64
        s_lshl_b32 s{sT0}, s{sT0}, {self.fsh}
        v_mov_b32 {V(vT)}, s{sT0}
        ''')
        self.spin('L_go', f'buffer_load_dword {V(vPOL)}, {V(vT)}, {S(SFLG)}, 0 offen sc1', f'v_cmp_ne_u32 vcc, 1, {V(vPOL)}')
        self.spin('L_poll', self.poll_issue(0), f'v_cmp_ne_u32 vcc, 1, {V(vPOL)}')
        e('s_barrier')
        e.label('L_poll0')
        self.nst = nst_join
        e.vq = self.join_vq
        self.stamp()
        self.phase2()
        if self.tlate:
            e('s_branch L_fin')
            e.label('L_fin2')
            e.vq = []; e.lq = []; e.hist = []
            if self.touch: self.touch_w2()
        e.label('L_fin')
        self.stamp_flush()
        e.label('L_end')
        e('s_endpgm')
        e.label('L_codeend')


HEAD = '''; out = gelu_tanh(x @ w1 + b1) @ w2 + b2, x (2048,640), w1 (640,1728), w2 (1728,640), all bf16.
; @launch grid=(256,1,1) block=(256,1,1) lds=163840
'''

def generate(stamps=False, **kw):
    g = Gen(stamps, **kw)
    k = NAME + '_kernel'
    g.e.raw(f'.globl {k}\n.p2align 8\n.type {k},@function\n{k}:')
    g.build()
    return HEAD + '.amdgcn_target "amdgcn-amd-amdhsa--gfx950"\n.text\n' + g.e.text() + f'''.section .rodata,"a"
.p2align 6
.amdhsa_kernel {k}
  .amdhsa_next_free_vgpr 512
  .amdhsa_next_free_sgpr 102
  .amdhsa_accum_offset 256
  .amdhsa_group_segment_fixed_size 0
  .amdhsa_kernarg_size 64
  .amdhsa_user_sgpr_count 2
  .amdhsa_user_sgpr_kernarg_segment_ptr 1
  .amdhsa_system_sgpr_workgroup_id_x 1
.end_amdhsa_kernel
'''

if __name__ == '__main__':
    out = sys.argv[1]; stamps = len(sys.argv) > 2 and sys.argv[2] == 'stamps'
    kw = eval(sys.argv[3]) if len(sys.argv) > 3 else {}
    open(out, 'w').write(generate(stamps, **kw))
```

```python
import sys, math, struct, copy
from emit import Emit, interleave

NAME = 'standalone__dense_activation_gelu__prompt'
M, D, F = 2048, 640, 1728
H_BYTES = 128 * 54 * 1024
FLG_OFF = 8 << 20
STAMP_OFF = 16 << 20
OOB = 0x40000000

def f32(x):
    return '0x%08x' % struct.unpack('<I', struct.pack('<f', x))[0]

C0 = -2.0 * math.sqrt(2.0 / math.pi) * math.log2(math.e)
C1 = C0 * 0.044715

sHS = 4
SX, SW1, SB1, SW2, SB2, SOUT, SDBG, SH, SFLG, SSTAMP = 20, 24, 28, 32, 36, 40, 44, 48, 52, 80
sW, sW4K, sMT, sFT, sKX, sKW, sT0, sT1, sT2, sT3 = 56, 57, 58, 59, 60, 61, 62, 63, 64, 65
sRT, sCT, sMB0, sNB, sU, sU13, sJ, sXCD, sSPIN, sT = 66, 67, 68, 69, 70, 71, 72, 73, 74, 75
sMB1, sMB2, sMB3, sNE = 76, 77, 78, 79
sEX, sST, sST2 = 84, 18, 86
sHB, sOB = 88, 94

def S(n): return f's[{n}:{n+3}]'
def V(n, k=1): return f'v{n}' if k == 1 else f'v[{n}:{n+k-1}]'
def A(n, k=1): return f'a{n}' if k == 1 else f'a[{n}:{n+k-1}]'

vLANE = 1
vT = 2
vOX, vOW, vOW2 = 10, 14, 18
vLX, vLW = 22, 28
vOH, vOB1 = 40, 41
vC0, vC1, vONE = 42, 44, 46
vG = 48
vB2 = 56
vRAW2 = 60
vACC = 64
vBIAS = 128
vRAW = 144
vF = 160
vPK = 128
vLW2 = 224
vOHL, vOH13, vOO, vOB2, vEXW, vEXR, vFL, vDBG, vSTO = 236, 237, 238, 239, 240, 242, 243, 244, 245
vHB, vH13B, vOOB, vFLL, vFST, vPOL, vPOL2 = 246, 247, 248, 249, 250, 251, 252
vACC2 = 64
vRX = 96
vPK2 = 112
vH = 160


class Gen:
    def __init__(self, stamps=False, hflags='sc1', rot1=(10, 6, 5), rot2=(10, 8), pre1=2, la=9, hpre=8,
                 plan=None, oflags='', touch=False, fine='', psleep=4, ro=None, fsh=7, fe=6, pl=6, pe=10, flf=False, map2='A', tlate=True, cpf=True, diag=None, lv=2, gap=True, rosh=True, xfl='', wfl='', w2fl=''):
        self.stamps = stamps; self.e = Emit(); self.hflags = hflags; self.nst = 0
        self.rot1 = rot1; self.rot2 = rot2; self.pre1 = pre1; self.la = la; self.hpre = hpre; self.oflags = oflags
        self.touch = touch; self.mapb = False; self.fine = fine; self.psleep = psleep; self.fsh = fsh; self.fe = fe; self.pl = pl; self.pe = pe; self.flf = flf; self.map2 = map2; self.tlate = tlate; self.cpf = cpf; self.diag = diag; self.gap = gap; self.lv = lv; self.rosh = rosh; self.dfl = {SX: xfl, SW1: wfl, SW2: w2fl}
        self.plan = plan or dict([(0, 8), (1, 8), (2, 9), (3, 9)] + [(u, 'g%d' % (u - 4)) for u in range(4, 8)] + [(u, 'post') for u in range(8, 14)])
        order = {'g0': 10, 'g1': 11, 'g2': 12, 'g3': 13, 'post': 14}
        pos = [order.get(self.plan[u], self.plan[u]) for u in range(14)]
        assert pos == sorted(pos) and all(pos[u] >= 6 + u // 2 for u in range(10)) and 2 <= pre1 <= 4
        self.readout_done = set()
        self.ro = ro or {'t19': [], 'post': [0, 1, 2, 3, 4, 5], 'b0': [6, 7, 8, 9, 10, 11, 12, 13]}

    def stamp(self):
        if not self.stamps: return
        e = self.e
        e.wait_all(vm=False)
        e(f's_memrealtime s[{sST}:{sST+1}]')
        e(f's_memtime s[{sST2}:{sST2+1}]')
        e.force('s_waitcnt lgkmcnt(0)')
        e(f'v_writelane_b32 {V(vSTO)}, s{sST}, {self.nst}')
        e(f'v_writelane_b32 {V(vSTO)}, s{sST2}, {32 + self.nst}')
        self.nst += 1

    def stamp_flush(self):
        if not self.stamps: return
        if self.diag:
            idx, wg = self.diag
            self.e(f'''
            v_readlane_b32 s{sT0}, {V(vSTO)}, {idx}
            s_nop 4
            s_sub_u32 s{sT1}, s{sT0}, s100
            s_cmp_eq_u32 s{sT0}, 0
            s_cselect_b32 s{sT1}, 0, s{sT1}
            ''')
            if wg is not None:
                self.e(f's_cmp_eq_u32 s2, {wg}\ns_cselect_b32 s{sT1}, s{sT1}, 0')
            self.e(f'''
            s_lshl_b32 s{sT1}, s{sT1}, 2
            s_add_u32 s{sT1}, s{sT1}, 4000
            L_diag:
            s_memrealtime s[{sST}:{sST+1}]
            s_waitcnt lgkmcnt(0)
            s_sub_u32 s{sT0}, s{sST}, s100
            s_cmp_lt_u32 s{sT0}, s{sT1}
            s_cbranch_scc1 L_diag
            ''')
            return
        self.e(f'''
        s_lshl_b32 s{sT0}, s2, 2
        s_add_u32 s{sT0}, s{sT0}, s{sW}
        s_lshl_b32 s{sT0}, s{sT0}, 8
        s_add_u32 s{sT0}, s{sT0}, {STAMP_OFF}
        v_lshlrev_b32 {V(vT)}, 2, {V(vLANE)}
        buffer_store_dword {V(vSTO)}, {V(vT)}, {S(SSTAMP)}, s{sT0} offen
        ''')

    def entry(self):
        e = self.e
        if self.cpf:
            k = NAME + '_kernel'
            e(f'''
            s_sub_u32 s3, s2, 224
            s_cmp_ge_u32 s3, {self.cpf if self.cpf > 1 else 32}
            s_cbranch_scc1 L_nopf
            s_getpc_b64 s[4:5]
            L_pc:
            s_sub_u32 s4, s4, L_pc-{k}
            s_subb_u32 s5, s5, 0
            s_mov_b32 s6, L_codeend-{k}
            s_mov_b32 s7, 0x20000
            v_lshlrev_b32 {V(vT+1)}, 7, v0
            buffer_load_dword v255, {V(vT+1)}, s[4:7], 0 offen
            L_nopf:
            ''')
            e.vq = []
        if self.diag:
            e('s_memrealtime s[100:101]')
        e('s_cmp_ge_u32 s2, 256')
        e('s_cbranch_scc1 L_end')
        slot = {SX: 0, SW1: 8, SB1: 16, SW2: 24, SB2: 32, SOUT: 40, SDBG: 48, SH: 56}
        size = {SX: M * D * 2, SW1: D * F * 2, SB1: F * 2, SW2: F * D * 2, SB2: D * 2, SOUT: M * D * 2, SDBG: 256, SH: H_BYTES}
        for r in slot:
            e(f's_load_dwordx2 s[{r}:{r+1}], s[0:1], {slot[r]}')
        if self.stamps:
            e(f's_load_dwordx2 s[{SSTAMP}:{SSTAMP+1}], s[0:1], 56')
            e(f's_mov_b32 s{SSTAMP+2}, {64 << 20}')
            e(f's_mov_b32 s{SSTAMP+3}, 0x20000')
            e(f'v_mov_b32 {V(vSTO)}, 0')
        e(f'''
        v_lshrrev_b32 {V(vT)}, 6, v0
        v_and_b32 {V(vLANE)}, 63, v0
        v_readfirstlane_b32 s{sW}, {V(vT)}
        s_and_b32 s{sXCD}, s2, 7
        s_lshr_b32 s{sJ}, s2, 3
        ''')
        for r in slot:
            e(f's_mov_b32 s{r+2}, {size[r]}')
            e(f's_mov_b32 s{r+3}, 0x20000')
        e(f's_lshl_b32 s{sW4K}, s{sW}, 12')

    def dma(self, voff, srd, soff, ldsbase, tag):
        ops = [f's_add_u32 m0, s{sW4K}, {ldsbase}']
        for i in range(4):
            ops.append((f'buffer_load_dwordx4 {V(voff+i)}, {S(srd)}, s{soff} offen offset:{1024*i} {self.dfl[srd]} lds', tag))
        return ops

    def put(self, ops):
        for x in ops:
            if callable(x): x()
            elif isinstance(x, tuple): self.e(x[0], x[1])
            else: self.e(x)

    @staticmethod
    def mix(*lists):
        items = []
        for k, l in enumerate(lists):
            for i, x in enumerate(l):
                items.append(((i + 0.5) / len(l), k, i, x))
        items.sort(key=lambda z: z[:3])
        return [z[3] for z in items]

    def p1_addr_dma(self):
        t = vT
        if self.mapb:
            self.e(f'''
            s_lshl_b32 s{sMT}, s{sXCD}, 1
            s_and_b32 s{sT0}, s{sJ}, 1
            s_add_u32 s{sMT}, s{sMT}, s{sT0}
            s_lshr_b32 s{sT1}, s{sJ}, 1
            s_mov_b32 s{sFT}, s{sT1}
            ''')
        else:
            self.e(f'''
            s_lshr_b32 s{sMT}, s{sXCD}, 1
            s_lshl_b32 s{sMT}, s{sMT}, 2
            s_and_b32 s{sT0}, s{sJ}, 3
            s_add_u32 s{sMT}, s{sMT}, s{sT0}
            s_and_b32 s{sFT}, s{sXCD}, 1
            s_mul_i32 s{sFT}, s{sFT}, 7
            s_lshr_b32 s{sT1}, s{sJ}, 2
            s_add_u32 s{sFT}, s{sFT}, s{sT1}
            ''')
        self.e(f'''
        s_mul_i32 s{sT0}, s{sT0}, {self.rot1[0]}
        s_mul_i32 s{sT1}, s{sT1}, {self.rot1[1]}
        s_mul_i32 s{sT2}, s{sXCD}, {self.rot1[2]}
        s_add_u32 s{sT0}, s{sT0}, s{sT1}
        s_add_u32 s{sT0}, s{sT0}, s{sT2}
        s_lshr_b32 s{sT0}, s{sT0}, 2
        s_mul_i32 s{sT1}, s{sT0}, 205
        s_lshr_b32 s{sT1}, s{sT1}, 11
        s_mul_i32 s{sT1}, s{sT1}, 10
        s_sub_u32 s{sT0}, s{sT0}, s{sT1}
        s_lshl_b32 s{sKX}, s{sT0}, 7
        s_mul_i32 s{sKW}, s{sT0}, {64*3456}
        s_lshl_b32 s{sT0}, s{sMT}, 2
        s_add_u32 s{sT0}, s{sT0}, s{sW}
        s_mul_i32 s{sT0}, s{sT0}, {32*1280}
        s_mul_i32 s{sT1}, s{sW}, {16*3456}
        s_lshl_b32 s{sT2}, s{sFT}, 8
        s_add_u32 s{sT1}, s{sT1}, s{sT2}
        s_sub_u32 s{sT2}, 3456, s{sT2}
        v_lshrrev_b32 {V(t)}, 3, {V(vLANE)}
        v_and_b32 {V(t+1)}, 7, {V(vLANE)}
        v_lshrrev_b32 {V(t+2)}, 1, {V(t)}
        v_xor_b32 {V(t+1)}, {V(t+1)}, {V(t+2)}
        v_lshlrev_b32 {V(t+1)}, 4, {V(t+1)}
        v_mul_u32_u24 {V(t)}, 1280, {V(t)}
        v_add_u32 {V(t)}, s{sT0}, {V(t)}
        v_add_u32 {V(vOX)}, {V(t)}, {V(t+1)}
        v_xor_b32 {V(t+1)}, 64, {V(t+1)}
        v_add_u32 {V(vOX+1)}, {V(t)}, {V(t+1)}
        v_add_u32 {V(vOX+1)}, {8*1280-1024}, {V(vOX+1)}
        v_add_u32 {V(vOX+2)}, {16*1280-2048}, {V(vOX)}
        v_add_u32 {V(vOX+3)}, {16*1280-2048}, {V(vOX+1)}
        v_lshrrev_b32 {V(t)}, 4, {V(vLANE)}
        v_and_b32 {V(t+1)}, 15, {V(vLANE)}
        v_lshlrev_b32 {V(t+2)}, 1, {V(t)}
        v_xor_b32 {V(t+1)}, {V(t+1)}, {V(t+2)}
        v_lshlrev_b32 {V(t+1)}, 4, {V(t+1)}
        v_xor_b32 {V(t+3)}, 0x80, {V(t+1)}
        v_mul_u32_u24 {V(t)}, 3456, {V(t)}
        v_mov_b32 {V(t+2)}, {OOB}
        v_add3_u32 {V(vOW)}, {V(t)}, {V(t+1)}, s{sT1}
        v_cmp_gt_u32 vcc, s{sT2}, {V(t+1)}
        v_add3_u32 {V(vOW+2)}, {V(t)}, {V(t+3)}, s{sT1}
        v_cndmask_b32 {V(vOW)}, {V(t+2)}, {V(vOW)}, vcc
        v_cmp_gt_u32 vcc, s{sT2}, {V(t+3)}
        v_add_u32 {V(vOW+1)}, 12800, {V(vOW)}
        v_cndmask_b32 {V(vOW+2)}, {V(t+2)}, {V(vOW+2)}, vcc
        v_add_u32 {V(vOW+3)}, {3*12800}, {V(vOW+2)}
        v_add_u32 {V(vOW+2)}, {2*12800}, {V(vOW+2)}
        s_lshr_b32 s{sT2}, s{sW}, 1
        s_lshl_b32 s{sT2}, s{sT2}, 7
        s_lshl_b32 s{sT3}, s{sFT}, 8
        s_add_u32 s{sT3}, s{sT2}, s{sT3}
        v_lshrrev_b32 {V(t)}, 4, {V(vLANE)}
        v_lshlrev_b32 {V(t)}, 3, {V(t)}
        v_add_u32 {V(vOB1)}, s{sT3}, {V(t)}
        ''')

    def p1_stage_dma(self, s):
        sl = (s % 5) * 32768
        ops = self.dma(vOX, SX, sKX, sl, ('st', s)) + self.dma(vOW, SW1, sKW, sl + 16384, ('st', s))
        if s < 9:
            ops += [f's_add_u32 s{sKX}, s{sKX}, 128', f's_add_u32 s{sKW}, s{sKW}, {64*3456}',
                    lambda: self.e(f's_cmp_eq_u32 s{sKX}, 1280\ns_cselect_b32 s{sKX}, 0, s{sKX}\ns_cselect_b32 s{sKW}, 0, s{sKW}')]
        return ops

    def p1_addr_rest(self):
        e = self.e; t = vT
        e(f'''
        s_and_b32 s{sT0}, s{sW}, 1
        s_lshr_b32 s{sT1}, s{sW}, 1
        s_lshl_b32 s{sT2}, s{sT0}, 13
        v_and_b32 {V(t)}, 15, {V(vLANE)}
        v_lshrrev_b32 {V(t+1)}, 4, {V(vLANE)}
        v_bfe_u32 {V(t+2)}, {V(vLANE)}, 1, 3
        v_lshlrev_b32 {V(t)}, 7, {V(t)}
        v_xor_b32 {V(t+2)}, {V(t+1)}, {V(t+2)}
        v_lshl_add_u32 {V(t)}, {V(t+2)}, 4, {V(t)}
        v_add_u32 {V(vLX)}, s{sT2}, {V(t)}
        v_xor_b32 {V(vLX+1)}, 64, {V(vLX)}
        v_bfe_u32 {V(t)}, {V(vLANE)}, 2, 2
        v_lshl_add_u32 {V(t+2)}, {V(t+1)}, 3, {V(t)}
        v_lshlrev_b32 {V(t+2)}, 8, {V(t+2)}
        v_and_b32 {V(t+3)}, 3, {V(vLANE)}
        v_lshl_add_u32 {V(t+2)}, {V(t+3)}, 3, {V(t+2)}
        v_add_u32 {V(t+2)}, 16384, {V(t+2)}
        v_and_b32 {V(t+3)}, 1, {V(t+1)}
        v_lshl_add_u32 {V(t)}, {V(t+3)}, 2, {V(t)}
        s_lshl_b32 s{sT2}, s{sT1}, 2
        ''')
        for fb in range(4):
            e(f'''
            s_add_u32 s{sT3}, s{sT2}, {fb}
            v_xor_b32 {V(t+3)}, s{sT3}, {V(t)}
            v_lshl_add_u32 {V(vLW+fb)}, {V(t+3)}, 5, {V(t+2)}
            ''')
        for st in (1, 2):
            for k in range(2): e(f'v_add_u32 {V(vLX+2*st+k)}, {65536*st}, {V(vLX+k)}')
            for k in range(4): e(f'v_add_u32 {V(vLW+4*st+k)}, {65536*st}, {V(vLW+k)}')
        e(f'''
        s_lshl_b32 s{sT2}, s{sMT}, 3
        s_lshl_b32 s{sT3}, s{sT0}, 2
        s_add_u32 s{sT2}, s{sT2}, s{sT3}
        s_mul_i32 s{sT2}, s{sT2}, 54
        s_lshl_b32 s{sT3}, s{sFT}, 2
        s_add_u32 s{sT2}, s{sT2}, s{sT3}
        s_lshl_b32 s{sT3}, s{sT1}, 1
        s_add_u32 s{sT2}, s{sT2}, s{sT3}
        s_lshl_b32 s{sT2}, s{sT2}, 10
        s_lshl_b32 s{sT3}, s{sFT}, 1
        s_add_u32 s{sT3}, s{sT3}, s{sT1}
        s_cmp_ge_u32 s{sT3}, 27
        s_cselect_b32 s{sT2}, {OOB}, s{sT2}
        v_lshlrev_b32 {V(t)}, 4, {V(vLANE)}
        v_add_u32 {V(vOH)}, s{sT2}, {V(t)}
        s_lshl_b32 s{sT2}, s{sMT}, 1
        s_add_u32 s{sT2}, s{sT2}, s{sT0}
        s_lshl_b32 s{sT2}, s{sT2}, {self.fsh + 2}
        s_cmp_ge_u32 s{sT3}, 27
        s_cselect_b32 s{sT2}, {OOB}, s{sT2}
        v_mov_b32 {V(vFST)}, s{sT2}
        s_mov_b32 s{sMB1}, {55296}
        s_mov_b32 s{sMB2}, {2*55296}
        s_mov_b32 s{sMB3}, {3*55296}
        v_mov_b32 {V(vC0)}, {f32(C0)}
        v_mov_b32 {V(vC0+1)}, {f32(C0)}
        v_mov_b32 {V(vC1)}, {f32(C1)}
        v_mov_b32 {V(vC1+1)}, {f32(C1)}
        v_mov_b32 {V(vONE)}, 1.0
        v_mov_b32 {V(vONE+1)}, 1.0
        ''')

    def p1_reads(self, t):
        s, ks = divmod(t, 2)
        sl = s % 5; st = sl // 2; off = (sl % 2) * 32768
        fa = vF + 32 * (t & 1); fbb = fa + 16
        r = []
        def ra(fb):
            for jh in range(2):
                r.append(f'ds_read_b64_tr_b16 {V(fa+4*fb+2*jh, 2)}, {V(vLW+4*st+fb)} offset:{off + (32*ks+4*jh)*256}')
        ra(0)
        for mb in range(4):
            r.append(f'ds_read_b128 {V(fbb+4*mb, 4)}, {V(vLX+2*st+ks)} offset:{off + 2048*mb}')
        ra(1); ra(2); ra(3)
        return r

    def p1_mfmas(self, t):
        fa = vF + 32 * (t & 1); fbb = fa + 16
        r = []
        for fb in range(4):
            for mb in range(4):
                acc = vACC + 16 * fb + 4 * mb
                c = V(vBIAS + 4 * fb, 4) if t == 0 else V(acc, 4)
                r.append(f'v_mfma_f32_16x16x32_bf16 {V(acc,4)}, {V(fa+4*fb,4)}, {V(fbb+4*mb,4)}, {c}')
        return r

    def gelu8(self, x0, x1, pk):
        g = vG; r = []
        P = lambda n: V(n, 2)
        xs = [x0, x0 + 2, x1, x1 + 2]
        for j in range(4): r.append(f'v_pk_mul_f32 {P(g+2*j)}, {P(xs[j])}, {P(xs[j])}')
        for j in range(4): r.append(f'v_pk_fma_f32 {P(g+2*j)}, {P(g+2*j)}, {P(vC1)}, {P(vC0)}')
        for j in range(4): r.append(f'v_pk_mul_f32 {P(g+2*j)}, {P(xs[j])}, {P(g+2*j)}')
        for j in range(8): r.append(f'v_exp_f32 {V(g+j)}, {V(g+j)}')
        for j in range(4): r.append(f'v_pk_add_f32 {P(g+2*j)}, {P(g+2*j)}, {P(vONE)}')
        for j in range(8): r.append(f'v_rcp_f32 {V(g+j)}, {V(g+j)}')
        for j in range(4): r.append(f'v_pk_mul_f32 {P(g+2*j)}, {P(xs[j])}, {P(g+2*j)}')
        for j in range(4): r.append(f'v_cvt_pk_bf16_f32 {V(pk+j)}, {V(g+2*j)}, {V(g+2*j+1)}')
        return r

    def at(self, where):
        return [op for u in range(14) if self.plan[u] == where for op in self.w2_dma(u)]

    def phase1(self):
        e = self.e
        self.p1_addr_dma()
        e.force('s_waitcnt lgkmcnt(0)')
        self.stamp()
        for fb in range(4):
            e(f'buffer_load_dwordx2 {V(vRAW+2*fb,2)}, {V(vOB1)}, {S(SB1)}, 0 offen offset:{32*fb}')
        self.put(self.p1_stage_dma(0))
        if '0' in self.fine: self.stamp()
        self.p1_addr_rest()
        self.p2_addr()
        if '0' in self.fine: self.stamp()
        for s in range(1, self.pre1):
            self.put(self.p1_stage_dma(s))
        for i in range(8):
            e(f'v_lshlrev_b32 {V(vBIAS+2*i)}, 16, {V(vRAW+i)}')
            e(f'v_and_b32 {V(vBIAS+2*i+1)}, 0xffff0000, {V(vRAW+i)}')
        if '0' in self.fine:
            self.stamp(); e.wait_tag(('st', 0)); self.stamp()
        e.wait_tag(('st', 0))
        e('s_barrier')
        self.stamp()
        late = [self.b2_load]
        nl = (len(late) + 9) // 10
        self.put(self.p1_reads(0))
        for s in range(10):
            dm = (self.p1_stage_dma(s + self.pre1) if s + self.pre1 < 10 else []) + self.at(s)
            q = (len(dm) + 1) // 2
            for ks in range(2):
                t = 2 * s + ks
                mf = self.p1_mfmas(t)
                if ks == 1 and s < 9:
                    e.wait_all(vm=False)
                    e.wait_tag(('st', s + 1))
                    e('s_barrier')
                rd = self.p1_reads(t + 1) if t < 19 else []
                part = dm[q * ks: q * ks + q]
                misc = late[nl * (t - 1): nl * t] if t >= 1 else []
                if t == 16: misc = [f'v_mov_b32 {V(vT)}, 0', f'buffer_load_dword {V(vDBG)}, {V(vT)}, {S(SDBG)}, 0 offen sc1']
                if t == 19: misc = self.readout(self.ro['t19'])
                interleave(e, mf[:14], self.mix(*[l for l in (rd, part, misc) if l]))
                self.put(mf[14:])
            if '1' in self.fine and s < 9: self.stamp()
        e('s_barrier')
        self.flg_srd()
        self.b2_unpack()
        self.stamp()
        n = 0
        for mb in range(4):
            extra = self.mix(*[l for l in (self.readout(self.ro.get('g%d' % mb, [])), self.at('g%d' % mb)) if l])
            q = (len(extra) + 1) // 2
            for P in range(2):
                pk = vPK + 4 * (n % 4)
                body = self.gelu8(vACC + 32 * P + 4 * mb, vACC + 32 * P + 16 + 4 * mb, pk)
                interleave(e, body, extra[q * P: q * P + q])
                so = '0' if mb == 0 else f's{sMB1 + mb - 1}'
                e(f'buffer_store_dwordx4 {V(pk,4)}, {V(vOH)}, {S(SH)}, {so} offen offset:{P*1024} {self.hflags}', ('h', max(mb - 1, 0)))
                n += 1
                if n == self.fe:
                    self.dbg_check('L_dbg')
                    self.flag(('h', 0), 0)
                if n == 8 and self.lv == 3: self.flag(('h', 1), 1)
        self.stamp()

    def dbg_check(self, label):
        e = self.e
        e(f'v_cmp_gt_u32 vcc, 32, {V(vDBG)}')
        e(f's_cbranch_vccz {label}_ok')
        vq, hist = list(e.vq), list(e.hist)
        e(f'v_mov_b32 {V(vT)}, 0')
        self.spin(label, f'buffer_load_dword {V(vDBG)}, {V(vT)}, {S(SDBG)}, 0 offen sc1', f'v_cmp_gt_u32 vcc, 32, {V(vDBG)}')
        e.vq, e.hist = vq, hist

    def flag(self, tag, late):
        e = self.e
        e(f'v_mov_b32 {V(vT+1)}, 1')
        e.wait_tag(tag)
        e(f"""
        s_mov_b64 exec, 1
        buffer_atomic_add {V(vT+1)}, {V(vFST)}, {S(SFLG)}, 0 offen offset:{late << self.fsh} sc1
        s_mov_b64 exec, -1
        """)

    def poll_issue(self, lvl):
        m, adr, dst = (7, vFLL, vPOL) if lvl == 2 else (1, vFL, vPOL2 if lvl else vPOL)
        return (f'v_mov_b32 {V(dst)}, 0\ns_mov_b64 exec, {m}\n'
                f'buffer_atomic_add {V(dst)}, {V(adr)}, {S(SFLG)}, 0 offen offset:{lvl << self.fsh} sc0 sc1\ns_mov_b64 exec, -1')

    def poll_cmp(self, lvl):
        return f's_mov_b64 exec, {7 if lvl == 2 else 1}\nv_cmp_gt_u32 vcc, 27, {V(vPOL2 if lvl == 1 else vPOL)}\ns_mov_b64 exec, -1'

    def poll_check(self, label, lvl):
        e = self.e
        e(f's_cmp_lg_u32 s{sW}, 0')
        e(f's_cbranch_scc1 {label}_ok')
        vq, hist = list(e.vq), list(e.hist)
        e(self.poll_cmp(lvl))
        e(f's_cbranch_vccz {label}_ok')
        self.spin(label, self.poll_issue(lvl), self.poll_cmp(lvl))
        e.vq, e.hist = vq, hist

    def p2_addr_ops(self):
        lines = []
        real = self.e
        self.e = lambda txt, tag=None: lines.extend(l.strip() for l in txt.strip('\n').split('\n') if l.strip())
        self.p2_addr()
        self.e = real
        ops = []
        i = 0
        while i < len(lines):
            j = i + 1
            if lines[i].startswith('s_cmp'):
                last = i
                for k in range(i + 1, min(len(lines), i + 4)):
                    if lines[k].startswith('s_cselect'): last = k
                    elif not lines[k].startswith('s_mov'): break
                j = last + 1
            ops.append('\n'.join(lines[i:j])); i = j
        return ops

    def p2_addr(self):
        e = self.e; t = vT
        if self.map2 == 'B':
            e(f'''
            s_mul_i32 s{sT}, s{sXCD}, 28
            s_add_u32 s{sT}, s{sT}, s{sJ}
            s_cmp_ge_u32 s{sT}, 220
            s_cselect_b32 s{sT}, 250, s{sT}
            s_lshl2_add_u32 s{sT1}, s{sXCD}, s{sJ}
            s_add_u32 s{sT1}, s{sT1}, {220 - 28}
            s_cmp_ge_u32 s{sJ}, 28
            s_cselect_b32 s{sT}, s{sT1}, s{sT}
            s_mul_i32 s{sRT}, s{sT}, 205
            s_lshr_b32 s{sRT}, s{sRT}, 11
            s_mul_i32 s{sT0}, s{sRT}, 10
            s_sub_u32 s{sCT}, s{sT}, s{sT0}
            s_mov_b32 s{sT1}, s{sCT}
            s_lshr_b32 s{sT}, s{sT}, 1
            s_mul_i32 s{sT0}, s{sRT}, 5
            ''')
        else:
            e(f'''
            s_lshr_b32 s{sT1}, s{sXCD}, 1
            s_mul_i32 s{sT}, s{sT1}, 28
            s_add_u32 s{sT}, s{sT}, s{sJ}
            s_cmp_ge_u32 s{sT}, 110
            s_cselect_b32 s{sT}, 125, s{sT}
            s_lshl_b32 s{sT1}, s{sT1}, 2
            s_add_u32 s{sT1}, s{sT1}, s{sJ}
            s_add_u32 s{sT1}, s{sT1}, {110 - 28}
            s_cmp_ge_u32 s{sJ}, 28
            s_cselect_b32 s{sT}, s{sT1}, s{sT}
            s_mul_i32 s{sRT}, s{sT}, 205
            s_lshr_b32 s{sRT}, s{sRT}, 10
            s_mul_i32 s{sT0}, s{sRT}, 5
            s_sub_u32 s{sT1}, s{sT}, s{sT0}
            s_and_b32 s{sCT}, s{sXCD}, 1
            s_mul_i32 s{sCT}, s{sCT}, 5
            s_add_u32 s{sCT}, s{sCT}, s{sT1}
            ''')
        if True:
            e(f'''
            s_cmp_ge_u32 s{sRT}, 22
            s_cselect_b32 s{sNB}, 6, 5
            s_mov_b32 s{sU}, s{sT1}
            s_lshl_b32 s{sT2}, s{sRT}, 2
            s_max_u32 s{sT0}, s{sRT}, 22
            s_sub_u32 s{sT0}, s{sT0}, 22
            s_add_u32 s{sT3}, s{sRT}, s{sT0}
            s_add_u32 s{sT3}, s{sT3}, 100
            ''')
        e(f'''
        s_lshl_b32 s{sT0}, s{sRT}, {self.fsh + 2}
        s_cmp_eq_u32 s{sW}, 0
        s_cselect_b32 s{sT0}, s{sT0}, {OOB}
        v_mov_b32 {V(vFL)}, s{sT0}
        v_mov_b32 {V(vFLL)}, s{sT0}
        s_lshr_b32 s{sT1}, s{sT3}, 2
        s_lshl_b32 s{sT1}, s{sT1}, {self.fsh + 2}
        s_cmp_eq_u32 s{sW}, 0
        s_cselect_b32 s{sT1}, s{sT1}, {OOB}
        v_writelane_b32 {V(vFLL)}, s{sT1}, 1
        s_add_u32 s{sT1}, s{sT3}, s{sNB}
        s_sub_u32 s{sT1}, s{sT1}, 5
        s_lshr_b32 s{sT1}, s{sT1}, 2
        s_lshl_b32 s{sT1}, s{sT1}, {self.fsh + 2}
        s_cmp_eq_u32 s{sW}, 0
        s_cselect_b32 s{sT1}, s{sT1}, {OOB}
        v_writelane_b32 {V(vFLL)}, s{sT1}, 2
        ''')
        for bb in range(6):
            src, add = (sT2, bb) if bb < 4 else (sT3, bb - 4)
            e(f'''
            s_add_u32 s{sT0}, s{src}, {add}
            s_mul_i32 s{sHB+bb}, s{sT0}, 55296
            s_mul_i32 s{sOB+bb}, s{sT0}, {16*1280}
            ''')
        e(f'''
        s_cmp_eq_u32 s{sNB}, 6
        s_cselect_b32 s{sHB+5}, s{sHB+5}, {OOB}
        s_mov_b32 s{sT1}, s{sU}
        ''')
        e(f'''
        s_mul_i32 s{sT1}, s{sT1}, {self.rot2[0]}
        s_mul_i32 s{sT0}, s{sRT}, {self.rot2[1]}
        s_add_u32 s{sT0}, s{sT0}, s{sT1}
        s_lshr_b32 s{sT0}, s{sT0}, 2
        s_mul_i32 s{sT1}, s{sT0}, 1261
        s_lshr_b32 s{sT1}, s{sT1}, 14
        s_mul_i32 s{sT1}, s{sT1}, 13
        s_sub_u32 s{sT0}, s{sT0}, s{sT1}
        s_mul_i32 s{sU}, s{sT0}, 163840
        s_lshl_b32 s{sHS}, s{sT0}, 12
        ''')
        for u in range(1, 13):
            e(f'''
            s_add_u32 s{sHS+u}, s{sHS+u-1}, 4096
            s_cmp_eq_u32 s{sHS+u}, {13*4096}
            s_cselect_b32 s{sHS+u}, 0, s{sHS+u}
            ''')
        e(f'''
        s_mov_b32 s{sHS+13}, {13*4096}
        s_cmp_lt_u32 s{sW}, 2
        s_cselect_b32 s{sU13}, 0, {OOB}
        s_mul_i32 s{sT0}, s{sW}, {32*1280}
        s_lshl_b32 s{sT1}, s{sCT}, 7
        s_add_u32 s{sT0}, s{sT0}, s{sT1}
        v_lshrrev_b32 {V(t)}, 3, {V(vLANE)}
        v_and_b32 {V(t+1)}, 7, {V(vLANE)}
        v_and_b32 {V(t+2)}, 6, {V(t)}
        v_xor_b32 {V(t+1)}, {V(t+1)}, {V(t+2)}
        v_lshlrev_b32 {V(t+1)}, 4, {V(t+1)}
        v_mul_u32_u24 {V(t+2)}, 1280, {V(t)}
        v_add3_u32 {V(vOW2)}, {V(t+2)}, {V(t+1)}, s{sT0}
        v_add_u32 {V(vOW2+1)}, 9216, {V(vOW2)}
        v_add_u32 {V(vOW2+2)}, {2*9216}, {V(vOW2)}
        v_add_u32 {V(vOW2+3)}, {3*9216}, {V(vOW2)}
        v_and_b32 {V(t)}, 3, {V(t)}
        v_lshrrev_b32 {V(t+1)}, 2, {V(vLANE)}
        v_lshlrev_b32 {V(t+1)}, 7, {V(t+1)}
        v_and_b32 {V(t+2)}, 3, {V(vLANE)}
        v_lshl_add_u32 {V(t+1)}, {V(t+2)}, 3, {V(t+1)}
        v_add_u32 {V(t+1)}, s{sW4K}, {V(t+1)}
        ''')
        for d in range(4):
            e(f'''
            v_xor_b32 {V(t+3)}, {d}, {V(t)}
            v_lshl_add_u32 {V(vLW2+d)}, {V(t+3)}, 5, {V(t+1)}
            ''')
        for st in (1, 2):
            for d in range(4): e(f'v_add_u32 {V(vLW2+4*st+d)}, {65536*st}, {V(vLW2+d)}')
        e(f'''
        s_lshl_b32 s{sT0}, s{sW}, 10
        v_lshl_add_u32 {V(vHB)}, {V(vLANE)}, 4, s{sT0}
        v_add_u32 {V(vH13B)}, s{sU13}, {V(vHB)}
        v_and_b32 {V(t)}, 15, {V(vLANE)}
        v_lshrrev_b32 {V(t+1)}, 4, {V(vLANE)}
        s_lshl_b32 s{sT0}, s{sCT}, 7
        v_lshl_add_u32 {V(vOB2)}, {V(t)}, 3, s{sT0}
        s_mul_i32 s{sT1}, s{sW}, {4*1280}
        v_mul_u32_u24 {V(t+2)}, 1280, {V(t+1)}
        v_add3_u32 {V(vOOB)}, {V(t+2)}, {V(vOB2)}, s{sT1}
        s_add_u32 s{sT0}, s{sW4K}, 65536
        v_and_b32 {V(t+2)}, 7, {V(t)}
        v_xor_b32 {V(t+2)}, {V(t+2)}, {V(t+1)}
        v_lshlrev_b32 {V(t+2)}, 4, {V(t+2)}
        v_lshl_add_u32 {V(t+2)}, {V(t)}, 8, {V(t+2)}
        v_add_u32 {V(vEXW)}, s{sT0}, {V(t+2)}
        v_xor_b32 {V(vEXW+1)}, 64, {V(vEXW)}
        s_lshl_b32 s{sT0}, s{sW}, 2
        v_add_u32 {V(t+2)}, s{sT0}, {V(t+1)}
        v_and_b32 {V(t+3)}, 7, {V(t+2)}
        v_xor_b32 {V(t+3)}, {V(t+3)}, {V(t)}
        v_lshlrev_b32 {V(t+3)}, 4, {V(t+3)}
        v_lshl_add_u32 {V(t+3)}, {V(t+2)}, 8, {V(t+3)}
        v_add_u32 {V(vEXR)}, 65536, {V(t+3)}
        ''')

    @staticmethod
    def slot(u):
        return u if u < 10 else u - 10

    def w2_dma(self, u):
        ops = []
        if u >= 10:
            ops.append(lambda: self.slot_free(u - 10))
        if u == 13:
            ops += [f'v_add_u32 {V(vOW2+i)}, s{sU13}, {V(vOW2+i)}' for i in range(4)] + [f's_mov_b32 s{sU}, {13*163840}']
        ops += self.dma(vOW2, SW2, sU, self.slot(u) * 16384, ('u', u))
        if u < 12:
            ops += [f's_add_u32 s{sU}, s{sU}, 163840', lambda: self.e(f's_cmp_eq_u32 s{sU}, {13*163840}\ns_cselect_b32 s{sU}, 0, s{sU}')]
        return ops

    def slot_free(self, u):
        assert u in self.readout_done
        regs = {('a', 16 * u + i) for i in range(16)}
        idx = [i for i, d in enumerate(self.e.lq) if d & regs]
        if idx: self.e._wait(lg=len(self.e.lq) - 1 - idx[-1])

    def readout(self, units):
        r = []
        for u in units:
            z = self.slot(u); st = z // 4; off = (z % 4) * 16384
            r.append(lambda u=u: self.e.wait_tag(('u', u)))
            r += [f'ds_read_b64_tr_b16 {A(16*u+4*d+2*jh, 2)}, {V(vLW2+4*st+d)} offset:{off + 2048*jh}' for d in range(4) for jh in range(2)]
            r.append(lambda u=u: self.readout_done.add(u))
        return r

    def h_load(self, n):
        b, u = divmod(n, 14)
        ops = []
        if u == 0:
            ops += [f'v_add_u32 {V(vOHL)}, s{sHB+b}, {V(vHB)}', f'v_add_u32 {V(vOH13)}, s{sHB+b}, {V(vH13B)}']
        if n == 28 - self.pl: ops.append(self.poll_issue(1 if self.lv == 3 else 2))
        if n == 42 - self.pl and self.lv == 3: ops.append(self.poll_issue(2))
        ops.append(f'buffer_load_dwordx4 {V(vH+4*u,4)}, {V(vOH13 if u == 13 else vOHL)}, {S(SH)}, s{sHS+u} offen {self.hflags}')
        return ops

    def b2_load(self):
        self.e(f'buffer_load_dwordx2 {V(vRAW2,2)}, {V(vOB2)}, {S(SB2)}, 0 offen')

    def b2_unpack(self):
        for i in range(2):
            self.e(f'v_lshlrev_b32 {V(vB2+2*i)}, 16, {V(vRAW2+i)}')
            self.e(f'v_and_b32 {V(vB2+2*i+1)}, 0xffff0000, {V(vRAW2+i)}')

    def fin_write(self, b):
        acc = vACC2 + 16 * (b & 1)
        return [f'ds_write_b128 {V(vEXW+(d&1))}, {V(acc+4*d,4)} offset:{16384*(b&1) + 128*(d>>1)}' for d in range(4)]

    def fin_bar(self):
        return [lambda: (self.e.wait_all(vm=False), self.e('s_barrier'))]

    def fin_read(self, b):
        return [f'ds_read_b128 {V(vRX+4*p,4)}, {V(vEXR)} offset:{16384*(b&1) + 4096*p}' for p in range(4)]

    def fin_out(self, b):
        r = []
        for j in range(4): r.append(f'v_add_f32 {V(vRX+j)}, {V(vRX+j)}, {V(vRX+4+j)}')
        for j in range(4): r.append(f'v_add_f32 {V(vRX+8+j)}, {V(vRX+8+j)}, {V(vRX+12+j)}')
        for j in range(4): r.append(f'v_add_f32 {V(vRX+j)}, {V(vRX+j)}, {V(vB2+j)}')
        for j in range(4): r.append(f'v_add_f32 {V(vRX+j)}, {V(vRX+j)}, {V(vRX+8+j)}')
        pk = vPK2 + 2 * (b & 1)
        for j in range(2): r.append(f'v_cvt_pk_bf16_f32 {V(pk+j)}, {V(vRX+2*j)}, {V(vRX+2*j+1)}')
        r.append(f'buffer_store_dwordx2 {V(pk,2)}, {V(vOOB)}, {S(SOUT)}, s{sOB+b} offen {self.oflags}')
        return r

    def block(self, b, last):
        e = self.e
        for u in range(14):
            n = 14 * b + u
            fill = []
            gate = 28 if n < 21 else (42 if n < 35 and self.lv == 3 else last)
            for _ in range(2):
                if self.issued < min(gate, n + 1 + self.la):
                    fill += self.h_load(self.issued); self.issued += 1
            if b == 0 and not self.rosh:
                nb0 = len(self.ro['b0'])
                for k, uu in enumerate(self.ro['b0']):
                    if u == max(0, uu - 7): fill += self.readout([uu])
            if b > 0:
                if 1 <= u <= 4: fill += self.fin_write(b - 1)[u - 1: u]
                if u == 6 and b < self.lv: fill.insert(0, lambda: self.poll_check(f'L_poll{b}', b if self.lv == 3 else 2))
                if u == 6: fill += self.fin_bar() + self.fin_read(b - 1)[:2]
                if u == 7: fill += self.fin_read(b - 1)[2:]
                if u >= 9: fill += self.fin_out(b - 1)[4 * (u - 9): 4 * (u - 8)]
            acc = vACC2 + 16 * (b & 1)
            mf = [f'v_mfma_f32_16x16x32_bf16 {V(acc+4*d,4)}, {A(16*u+4*d,4)}, {V(vH+4*u,4)}, {V(acc+4*d,4) if u else 0}' for d in range(4)]
            interleave(e, mf, fill)

    def tail(self, b):
        self.stamp()
        self.put(self.fin_write(b) + self.fin_bar() + self.fin_read(b) + self.fin_out(b))
        if self.stamps: self.e.wait_all()
        self.stamp()

    def phase2(self):
        e = self.e
        for n in range(self.hpre): self.put(self.h_load(n))
        self.issued = self.hpre; self.lchecked = False
        if self.rosh: self.put(self.readout(self.ro['b0']))
        for b in range(5):
            self.block(b, 84)
            if '2' in self.fine and b < 4: self.stamp()
        e(f's_cmp_eq_u32 s{sNB}, 6')
        e('s_cbranch_scc1 L_six')
        saved = (list(e.vq), list(e.lq), list(e.hist), self.nst)
        self.tail(4)
        e('s_branch L_fin')
        e.label('L_six')
        e.vq, e.lq, e.hist, self.nst = saved
        self.block(5, 84)
        self.tail(5)

    def spin(self, label, load, check):
        e = self.e
        e(f's_mov_b32 s{sSPIN}, 0')
        e.label(label)
        e(load)
        e.force('s_waitcnt vmcnt(0)')
        e(check)
        e(f's_cbranch_vccz {label}_ok')
        if self.psleep: e(f's_sleep {self.psleep}')
        e(f's_add_u32 s{sSPIN}, s{sSPIN}, 1')
        e(f's_cmp_lt_u32 s{sSPIN}, 200000')
        e(f's_cbranch_scc1 {label}')
        e.label(label + '_ok')

    def flg_srd(self):
        self.e(f'''
        s_add_u32 s{SFLG}, s{SH}, {FLG_OFF}
        s_addc_u32 s{SFLG+1}, s{SH+1}, 0
        s_mov_b32 s{SFLG+2}, {128 << self.fsh}
        s_mov_b32 s{SFLG+3}, 0x20000
        ''')

    def touch_w2(self):
        e = self.e; t = vT
        if self.map2 == 'B':
            e(f'''
            s_sub_u32 s{sT0}, s{sJ}, 28
            s_lshl_b32 s{sT0}, s{sT0}, 2
            s_add_u32 s{sT0}, s{sT0}, s{sW}
            s_mul_i32 s{sT0}, s{sT0}, {1080*128}
            s_mul_i32 s{sT1}, s{sXCD}, 135
            v_add_u32 {V(t)}, s{sT1}, {V(vLANE)}
            ''')
            for n in range(17):
                e(f'''
                v_subrev_u32 {V(t+1)}, 1080, {V(t)}
                v_min_u32 {V(t+1)}, {V(t+1)}, {V(t)}
                v_lshlrev_b32 {V(t+1)}, 7, {V(t+1)}
                buffer_load_dword {V(vF+n)}, {V(t+1)}, {S(SW2)}, s{sT0} offen
                v_add_u32 {V(t)}, 64, {V(t)}
                ''')
            return
        e(f'''
        s_sub_u32 s{sT0}, s{sJ}, 28
        s_lshl_b32 s{sT0}, s{sT0}, 2
        s_add_u32 s{sT0}, s{sT0}, s{sW}
        s_mul_i32 s{sT0}, s{sT0}, 540
        s_lshr_b32 s{sT1}, s{sXCD}, 1
        s_mul_i32 s{sT1}, s{sT1}, 135
        s_and_b32 s{sT2}, s{sXCD}, 1
        s_mul_i32 s{sT2}, s{sT2}, 640
        v_add_u32 {V(t)}, s{sT1}, {V(vLANE)}
        ''')
        for n in range(9):
            e(f'''
            v_subrev_u32 {V(t+1)}, 540, {V(t)}
            v_min_u32 {V(t+1)}, {V(t+1)}, {V(t)}
            v_add_u32 {V(t+1)}, s{sT0}, {V(t+1)}
            v_mul_u32_u24 {V(t+2)}, 52429, {V(t+1)}
            v_lshrrev_b32 {V(t+2)}, 18, {V(t+2)}
            v_mul_u32_u24 {V(t+2)}, 640, {V(t+2)}
            v_lshl_add_u32 {V(t+1)}, {V(t+1)}, 7, {V(t+2)}
            buffer_load_dword {V(vF+n)}, {V(t+1)}, {S(SW2)}, s{sT2} offen
            v_add_u32 {V(t)}, 64, {V(t)}
            ''')

    def touch_gaps(self):
        assert self.rot1[0] == 10
        e = self.e; t = vT
        e(f'''
        s_sub_u32 s{sT0}, s{sJ}, 28
        s_lshl2_add_u32 s{sT0}, s{sT0}, s{sW}
        s_lshr_b32 s{sT1}, s{sT0}, 1
        s_mul_i32 s{sT2}, s{sT1}, {self.rot1[1]}
        s_mul_i32 s{sT3}, s{sXCD}, {self.rot1[2]}
        s_add_u32 s{sT2}, s{sT2}, s{sT3}
        s_and_b32 s{sT3}, s{sT2}, 2
        s_lshr_b32 s{sT2}, s{sT2}, 2
        s_sub_u32 s{sT2}, s{sT2}, s{sT3}
        s_add_u32 s{sT2}, s{sT2}, 4
        s_and_b32 s{sT0}, s{sT0}, 1
        s_mul_i32 s{sT0}, s{sT0}, 5
        s_add_u32 s{sT2}, s{sT2}, s{sT0}
        s_mul_i32 s{sT3}, s{sT2}, 205
        s_lshr_b32 s{sT3}, s{sT3}, 11
        s_mul_i32 s{sT3}, s{sT3}, 10
        s_sub_u32 s{sT2}, s{sT2}, s{sT3}
        s_mul_i32 s{sT2}, s{sT2}, {64*3456}
        s_and_b32 s{sT3}, s{sXCD}, 1
        s_mul_i32 s{sT3}, s{sT3}, 7
        s_add_u32 s{sT3}, s{sT3}, s{sT1}
        s_cmp_lt_u32 s{sT1}, 7
        s_cselect_b32 s{sT2}, s{sT2}, {OOB}
        s_lshl_b32 s{sT0}, s{sT3}, 8
        s_add_u32 s{sT2}, s{sT2}, s{sT0}
        s_cmp_lt_u32 s{sT3}, 13
        s_cselect_b32 s{sT0}, 128, 0
        v_mul_u32_u24 {V(t)}, 3456, {V(vLANE)}
        v_add_u32 {V(t)}, s{sT2}, {V(t)}
        v_add_u32 {V(t+1)}, s{sT0}, {V(t)}
        buffer_load_dword v254, {V(t)}, {S(SW1)}, 0 offen
        buffer_load_dword v253, {V(t+1)}, {S(SW1)}, 0 offen
        ''')

    def build(self):
        e = self.e
        self.entry()
        e(f's_cmp_ge_u32 s{sJ}, 28')
        e('s_cbranch_scc1 L_idle1')
        self.phase1()
        if self.pe == 0: e(self.poll_issue(0))
        pre = [u for u in self.ro['post'] if u < 4]
        self.put(self.readout(pre))
        if self.flf: self.flag(('h', 2), 2)
        for u in range(14):
            if self.plan[u] == 'post':
                if u == self.pe: e(self.poll_issue(0))
                self.put(self.w2_dma(u))
        if self.pe == 1: e(self.poll_issue(0))
        self.put(self.readout([u for u in self.ro['post'] if u >= 4]))
        if not self.flf: self.flag(('h', 2), 2)
        e(f's_cmp_ge_u32 s{sT}, 125')
        e('s_cbranch_scc1 L_fin')
        e.wait_all(vm=False)
        self.stamp()
        self.poll_check('L_pollE', 0)
        e('s_barrier')
        self.join_vq = list(e.vq)
        e('s_branch L_join')
        nst_join = self.nst
        e.label('L_idle1')
        e.vq = []; e.lq = []; e.hist = []; self.readout_done = set()
        e.force('s_waitcnt lgkmcnt(0)')
        if self.gap: self.touch_gaps()
        self.flg_srd()
        e(f'''
        s_cmp_lg_u32 s{sW}, 0
        s_cbranch_scc1 L_noclear
        s_sub_u32 s{sT0}, s2, 224
        s_mul_i32 s{sT0}, s{sT0}, {4 << self.fsh}
        v_lshrrev_b32 {V(vT)}, 3, {V(vLANE)}
        v_lshlrev_b32 {V(vT)}, {self.fsh}, {V(vT)}
        v_and_b32 {V(vT+1)}, 7, {V(vLANE)}
        v_lshl_add_u32 {V(vT)}, {V(vT+1)}, 4, {V(vT)}
        v_add_u32 {V(vT)}, s{sT0}, {V(vT)}
        v_mov_b32 {V(vT+2)}, 0
        v_mov_b32 {V(vT+3)}, 0
        v_mov_b32 {V(vT+4)}, 0
        v_mov_b32 {V(vT+5)}, 0
        v_mov_b32 {V(vT+6)}, 1
        s_mov_b32 exec_hi, 0
        buffer_store_dwordx4 {V(vT+2,4)}, {V(vT)}, {S(SFLG)}, 0 offen sc1
        s_mov_b64 exec, -1
        ''')
        e.force('s_waitcnt vmcnt(0)')
        e(f'''
        s_mov_b64 exec, 1
        buffer_atomic_add {V(vT+6)}, {V(vT+2)}, {S(SDBG)}, 0 offen sc1
        s_mov_b64 exec, -1
        ''')
        e.label('L_noclear')
        if self.touch and not self.tlate: self.touch_w2()
        self.p2_addr()
        e(f's_cmp_ge_u32 s{sT}, 125')
        e('s_cbranch_scc1 L_fin2' if self.tlate else 's_cbranch_scc1 L_fin')
        self.b2_load()
        for u in range(10): self.put(self.w2_dma(u))
        self.b2_unpack()
        self.put(self.readout(range(4)))
        for u in range(10, 14): self.put(self.w2_dma(u))
        self.put(self.readout([u for u in range(4, 14) if u not in self.ro['b0']]))
        e.wait_all()
        if self.touch and self.tlate: self.touch_w2()
        e(f'v_mov_b32 {V(vT)}, 0')
        self.spin('L_dbg2', f'buffer_load_dword {V(vDBG)}, {V(vT)}, {S(SDBG)}, 0 offen sc1', f'v_cmp_gt_u32 vcc, 32, {V(vDBG)}')
        e(f's_cmp_lg_u32 s{sW}, 0')
        e('s_cbranch_scc1 L_poll_ok')
        self.spin('L_poll', self.poll_issue(0), self.poll_cmp(0))
        e('s_barrier')
        e.label('L_join')
        self.nst = nst_join
        e.vq = self.join_vq
        self.stamp()
        self.phase2()
        if self.tlate:
            e('s_branch L_fin')
            e.label('L_fin2')
            e.vq = []; e.lq = []; e.hist = []
            if self.touch: self.touch_w2()
        e.label('L_fin')
        self.stamp_flush()
        e.label('L_end')
        e('s_endpgm')
        e.label('L_codeend')


HEAD = '''; out = gelu_tanh(x @ w1 + b1) @ w2 + b2, x (2048,640), w1 (640,1728), w2 (1728,640), all bf16.
; @launch grid=(256,1,1) block=(256,1,1) lds=163840
'''

def generate(stamps=False, **kw):
    g = Gen(stamps, **kw)
    k = NAME + '_kernel'
    g.e.raw(f'.globl {k}\n.p2align 8\n.type {k},@function\n{k}:')
    g.build()
    return HEAD + '.amdgcn_target "amdgcn-amd-amdhsa--gfx950"\n.text\n' + g.e.text() + f'''.section .rodata,"a"
.p2align 6
.amdhsa_kernel {k}
  .amdhsa_next_free_vgpr 512
  .amdhsa_next_free_sgpr 102
  .amdhsa_accum_offset 256
  .amdhsa_group_segment_fixed_size 0
  .amdhsa_kernarg_size 64
  .amdhsa_user_sgpr_count 2
  .amdhsa_user_sgpr_kernarg_segment_ptr 1
  .amdhsa_system_sgpr_workgroup_id_x 1
.end_amdhsa_kernel
'''

if __name__ == '__main__':
    out = sys.argv[1]; stamps = len(sys.argv) > 2 and sys.argv[2] == 'stamps'
    kw = eval(sys.argv[3]) if len(sys.argv) > 3 else {}
    open(out, 'w').write(generate(stamps, **kw))
```
